```python
import torch

def _softmax(x, axis=-1):
    return torch.softmax(x, dim=axis)

def _gelu(x):
    return torch.nn.functional.gelu(x, approximate='tanh')

def _silu(x):
    return torch.nn.functional.silu(x)

def _sigmoid(x):
    return torch.sigmoid(x)

def _layernorm(x, axis=-1, eps=1e-05):
    m = x.mean(dim=axis, keepdim=True)
    v = x.var(dim=axis, keepdim=True, unbiased=False)
    return (x - m) / torch.sqrt(v + eps)

def _scatter_add(tgt, idx, src, axis=0):
    return tgt.clone().index_add_(axis, idx, src)

def _segment_sum(src, seg, n):
    out = torch.zeros((n,) + src.shape[1:], dtype=src.dtype)
    return out.index_add_(0, seg, src)

def _pad(x, pw):
    flat = tuple((v for pair in reversed(pw) for v in pair))
    return torch.nn.functional.pad(x, flat)
kernel_name = 'gated_mix__sliding_local_dilated__mixer_gmlp__prompt'

def setup_inputs():

    _w = lambda a: (lambda t: t.to(torch.bfloat16) if t.is_floating_point() else t)(torch.as_tensor(a))

    def _A_setup():
        B, S, D = (1, 2048, 1024)
        return {'x': _w((lambda *s: torch.randn(*s, dtype=torch.bfloat16) * 0.05)(B, S, D)), 'wqkv': _w((lambda *s: torch.randn(*s, dtype=torch.bfloat16) * 0.8)(D, 3 * D)), 'wo': _w((lambda *s: torch.randn(*s, dtype=torch.bfloat16) * 0.05)(D, D))}
    _A_in = _A_setup()

    def _B_setup():
        B, S, D, F = (1, 2048, 1024, 3584)
        Fh = F // 2
        return {'x': _w((lambda *s: torch.randn(*s, dtype=torch.bfloat16) * 0.05)(B, S, D)), 'w_in': _w((lambda *s: torch.randn(*s, dtype=torch.bfloat16) * 0.4)(D, 2 * Fh)), 'w_sp': _w(0.01 * (lambda *s: torch.randn(*s, dtype=torch.bfloat16) * 0.4)(S, S)), 'b_sp': _w(1.0 + 0.01 * (lambda *s: torch.randn(*s, dtype=torch.bfloat16) * 0.1)(S)), 'w_out': _w((lambda *s: torch.randn(*s, dtype=torch.bfloat16) * 0.1)(Fh, D))}
    _B_in = _B_setup()
    return {'A_x': _A_in['x'], 'A_wqkv': _A_in['wqkv'], 'A_wo': _A_in['wo'], 'B_x': _B_in['x'], 'B_w_in': _B_in['w_in'], 'B_w_sp': _B_in['w_sp'], 'B_b_sp': _B_in['b_sp'], 'B_w_out': _B_in['w_out'], 'gate_w': _w((lambda *s: torch.randn(*s, dtype=torch.bfloat16) * 0.05)(1024) * 16.0)}

def reference(A_x, A_wqkv, A_wo, B_x, B_w_in, B_w_sp, B_b_sp, B_w_out, gate_w):

    def _A_ref(x, wqkv, wo):
        B, S, D = x.shape
        H = 32
        Dh = D // H
        W, dil = (8, 2)
        qkv = (lambda x, *d: x.permute(*d))((x @ wqkv).reshape(B, S, 3, H, Dh), 2, 0, 3, 1, 4)
        q, k, v = (qkv[0], qkv[1], qkv[2])
        scale = Dh ** (-0.5)
        pos = torch.arange(S)
        off = torch.arange(W) * dil
        idx = pos[:, None] - off[None, :]
        mask = idx >= 0
        idx_c = torch.where(mask, idx, 0).reshape(-1)
        kg = k[:, :, idx_c, :].reshape(B, H, S, W, Dh)
        vg = v[:, :, idx_c, :].reshape(B, H, S, W, Dh)
        logits = torch.einsum('bhsd,bhswd->bhsw', q, kg) * scale
        logits = torch.where(mask[None, None, :, :], logits, -1000000000.0)
        attn = _softmax(logits, axis=-1)
        o = torch.einsum('bhsw,bhswd->bhsd', attn, vg)
        return (lambda x, *d: x.permute(*d))(o, 0, 2, 1, 3).reshape(B, S, D) @ wo

    def _B_ref(x, w_in, w_sp, b_sp, w_out):
        B, S, D = x.shape
        F = w_in.shape[-1]
        Fh = F // 2
        z = _gelu(torch.einsum('bsd,df->bsf', x, w_in))
        z1 = z[..., :Fh].clone()
        z2 = _layernorm(z[..., Fh:], axis=-1)
        g = torch.einsum('ts,bsf->btf', w_sp, z2) + b_sp[None, :, None]
        return torch.einsum('bsf,fd->bsd', z1 * g, w_out)
    x = A_x
    g = _sigmoid((x * gate_w).sum(-1, keepdims=True))
    a = _A_ref(x, A_wqkv, A_wo)
    b = _B_ref(x, B_w_in, B_w_sp, B_b_sp, B_w_out)
    return g * a + (1 - g) * b
```

```python
import re

TRANS = ("v_exp_f32", "v_log_f32", "v_rcp_f32", "v_rsq_f32", "v_sqrt_f32", "v_sin_f32", "v_cos_f32")
_REG = re.compile(r"^(-|abs\()?([vas])(\d+)\)?$")
_RNG = re.compile(r"^(-)?([vas])\[(\d+):(\d+)\]$")


def regs_of(op):
    op = op.strip()
    m = _REG.match(op)
    if m:
        return {(m.group(2), int(m.group(3)))}
    m = _RNG.match(op)
    if m:
        return {(m.group(2), i) for i in range(int(m.group(3)), int(m.group(4)) + 1)}
    if op == "vcc":
        return {("s", "vcc_lo"), ("s", "vcc_hi")}
    if op in ("vcc_lo", "vcc_hi", "m0", "exec_lo", "exec_hi"):
        return {("s", op)}
    if op == "exec":
        return {("s", "exec_lo"), ("s", "exec_hi")}
    return set()


class Ins:
    __slots__ = ("text", "mn", "ops", "mods", "dst", "src", "cls", "srcC", "srcAB", "store_data")

    def __init__(self, text):
        self.text = text
        t = text.split(";")[0].strip()
        parts = t.split(None, 1)
        self.mn = parts[0]
        rest = parts[1] if len(parts) > 1 else ""
        ops = [o.strip() for o in rest.split(",")] if rest else []
        self.mods = ""
        if ops:
            depth = 0
            fixed = []
            for o in ops:
                if depth > 0:
                    fixed[-1] += "," + o
                else:
                    fixed.append(o)
                depth += o.count("[") - o.count("]") + o.count("(") - o.count(")")
            ops = fixed
            last = ops[-1].split(None, 1)
            ops[-1] = last[0]
            self.mods = last[1] if len(last) > 1 else ""
        self.ops = ops
        self.dst, self.src = set(), set()
        self.srcC, self.srcAB, self.store_data = set(), set(), set()
        mn = self.mn
        R = regs_of
        if mn.startswith("v_mfma"):
            self.cls = "mfma"
            self.dst = R(ops[0])
            self.srcAB = R(ops[1]) | R(ops[2])
            self.srcC = R(ops[3])
            self.src = self.srcAB | self.srcC
        elif mn.startswith("ds_"):
            self.cls = "ds"
            if mn.startswith(("ds_read", "ds_bpermute", "ds_permute", "ds_swizzle")):
                self.dst = R(ops[0])
                for o in ops[1:]:
                    self.src |= R(o)
            else:
                for o in ops:
                    self.src |= R(o)
        elif mn.startswith(("buffer_", "global_")):
            self.cls = "vmem"
            lds = " lds" in (" " + self.mods) or "_lds_" in mn
            if mn in ("buffer_inv", "buffer_wbl2"):
                pass
            elif lds:
                self.cls = "dma"
                for o in ops:
                    self.src |= R(o)
                self.src.add(("s", "m0"))
            elif "_load" in mn:
                self.dst = R(ops[0])
                for o in ops[1:]:
                    self.src |= R(o)
            elif "atomic" in mn:
                for o in ops:
                    self.src |= R(o)
                if "sc0" in self.mods:
                    self.dst = R(ops[0])
            else:
                for o in ops:
                    self.src |= R(o)
                if mn.endswith(("x3", "x4")):
                    self.store_data = R(ops[0]) if mn.startswith("buffer_") else R(ops[1])
        elif mn.startswith("v_"):
            self.cls = "valu"
            if "swap" in mn and "permlane" in mn:
                self.dst = R(ops[0]) | R(ops[1])
                self.src = set(self.dst)
            elif mn.startswith(("v_add_co", "v_sub_co", "v_addc_co", "v_subb_co", "v_subrev_co")):
                self.dst = R(ops[0]) | R(ops[1])
                for o in ops[2:]:
                    self.src |= R(o)
            else:
                self.dst = R(ops[0])
                for o in ops[1:]:
                    self.src |= R(o)
                if mn.startswith(("v_fmac", "v_dot2c", "v_writelane")) or "dpp" in mn or "row_" in self.mods or "quad_perm" in self.mods:
                    self.src |= self.dst
                if mn.startswith("v_cmp") and ops[0] == "vcc":
                    self.dst = R("vcc")
                if mn.startswith("v_cndmask") and len(ops) == 3:
                    self.src |= R("vcc")
        elif mn.startswith("s_"):
            self.cls = "salu"
            if mn.startswith(("s_cmp", "s_bitcmp", "s_waitcnt", "s_nop", "s_barrier", "s_cbranch", "s_branch", "s_endpgm",
                              "s_sleep", "s_setprio")):
                for o in ops:
                    self.src |= R(o)
            else:
                if ops:
                    self.dst = R(ops[0])
                for o in ops[1:]:
                    self.src |= R(o)
                if "saveexec" in mn:
                    self.dst |= R("exec")
        else:
            raise ValueError("unknown instruction: " + text)

    def is_dpp(self):
        return "dpp" in self.mn or "row_" in self.mods or "quad_perm" in self.mods


def _vec(regs):
    return {r for r in regs if r[0] in "va"}


def _sca(regs):
    return {r for r in regs if r[0] == "s"}


def need_states(p, c):
    n = 0
    if p.cls == "valu":
        vd = _vec(p.dst)
        sd = _sca(p.dst)
        if c.cls == "mfma" and vd & c.src:
            n = max(n, 2)
        if c.cls == "mfma" and p.mn.startswith("v_pk_"):
            n = max(n, 2)
        if c.cls == "valu":
            if vd & c.src:
                if p.mn.startswith(TRANS) and not c.mn.startswith(TRANS):
                    n = max(n, 1)
                if "permlane" in c.mn or c.is_dpp():
                    n = max(n, 2)
                if c.mn.startswith(("v_readlane", "v_readfirstlane")):
                    n = max(n, 1)
            if sd & c.src:
                n = max(n, 4 if c.mn.startswith(("v_readlane", "v_writelane")) else 2)
        if c.cls in ("vmem", "dma") and sd & c.src:
            n = max(n, 5)
        if c.cls == "salu" and sd & c.src:
            n = max(n, 1)
    elif p.cls == "mfma":
        passes = 8 if "32x32" in p.mn else 4
        big = {4: 8, 8: 12}[passes]
        if c.cls == "mfma":
            if p.dst & c.srcAB:
                n = max(n, big)
            if p.dst & c.srcC and not (p.dst == c.srcC and p.mn == c.mn):
                n = max(n, big - 2)
            if p.dst & c.dst and not (p.dst == c.srcC == c.dst):
                n = max(n, big - 2)
        else:
            if p.dst & (c.src | c.dst):
                n = max(n, big)
            if c.cls == "valu" and p.srcC & c.dst:
                n = max(n, {4: 3, 8: 7}[passes])
    elif p.cls == "salu":
        if ("s", "m0") in p.dst and (c.cls == "dma" or c.mn.startswith("v_writelane")):
            n = max(n, 1)
    elif p.cls == "vmem":
        if p.store_data & c.dst:
            n = max(n, 2 if c.cls == "valu" else 1)
    return n


HORIZON = 14


class Asm:
    def __init__(self):
        self.items = []

    def __call__(self, s, *more):
        for chunk in (s,) + more:
            if isinstance(chunk, (list, tuple)):
                for c in chunk:
                    self(c)
                continue
            for line in chunk.split("\n"):
                line = line.strip()
                if line:
                    self.items.append(line)

    def label(self, name):
        self.items.append(name + ":")

    def raw(self, s):
        self.items.append("\x00" + s)

    def finish(self):
        items = []
        for it in self.items:
            if it.startswith("\x00"):
                items.append(("raw", it[1:]))
            elif it.startswith((";", ".")):
                items.append(("raw", it))
            elif re.match(r"^[\w.$]+:$", it):
                items.append(("label", it[:-1]))
            else:
                items.append(("ins", Ins(it)))
        at_label = {}
        n_ins = 0
        for _ in range(4):
            out = []
            hist = []
            changed = False
            saved = {k: list(v) for k, v in at_label.items()}
            new_saved = {}
            for kind, x in items:
                if kind == "raw":
                    out.append((kind, x))
                    continue
                if kind == "label":
                    states = [hist] + saved.get(x, []) + new_saved.get(x, [])
                    merged = {}
                    for st in states:
                        for ins, age in st:
                            k = id(ins)
                            if k not in merged or merged[k][1] > age:
                                merged[k] = (ins, age)
                    hist = list(merged.values())
                    out.append((kind, x))
                    continue
                need = 0
                for ins, age in hist:
                    need = max(need, need_states(ins, x) - age)
                if need > 0:
                    nop = Ins(f"s_nop {need - 1}")
                    out.append(("ins", nop))
                    hist = [(i, a + need) for i, a in hist]
                    changed = True
                    n_ins += 1
                out.append((kind, x))
                step = 1
                if x.mn == "s_nop":
                    step = int(x.ops[0], 0) + 1
                hist = [(i, a + step) for i, a in hist if a + step < HORIZON]
                hist.append((x, 0))
                if x.mn.startswith(("s_cbranch", "s_branch")):
                    new_saved.setdefault(x.ops[0], []).append(list(hist))
                    if x.mn == "s_branch":
                        hist = []
                if x.mn == "s_endpgm":
                    hist = []
            items = out
            first = not at_label
            at_label = new_saved
            if not changed and not first:
                break
        self.n_nops = n_ins
        lines = []
        for kind, x in items:
            if kind == "raw":
                lines.append(x)
            elif kind == "label":
                lines.append(x + ":")
            else:
                lines.append("    " + x.text)
        return "\n".join(lines) + "\n"


def interleave(main, fillers, start=0, end=None, per_gap=1):
    end = len(main) if end is None else end
    gaps = [[] for _ in main]
    n = len(fillers)
    span = end - start
    for i, f in enumerate(fillers):
        pos = start + (i * span) // max(n, 1)
        gaps[min(pos, len(main) - 1)].append(f)
    out = []
    for m, g in zip(main, gaps):
        out.append(m)
        for f in g:
            if isinstance(f, (list, tuple)):
                out.extend(f)
            else:
                out.append(f)
    return out


def weave(main, placed):
    gaps = [[] for _ in main]
    for pos, f in placed:
        gaps[min(max(pos, 0), len(main) - 1)].append(f)
    out = []
    for m, g in zip(main, gaps):
        out.append(m)
        for f in g:
            if isinstance(f, (list, tuple)):
                out.extend(f)
            else:
                out.append(f)
    return out


def vr(base, n=1):
    return f"v{base}" if n == 1 else f"v[{base}:{base + n - 1}]"


def ar(base, n=1):
    return f"a{base}" if n == 1 else f"a[{base}:{base + n - 1}]"


def sr(base, n=1):
    return f"s{base}" if n == 1 else f"s[{base}:{base + n - 1}]"


def f2u(x):
    import struct
    return struct.unpack("<I", struct.pack("<f", x))[0]
```

```python
from asmlib import *

NAME = "gated_mix__sliding_local_dilated__mixer_gmlp__prompt"

KA_X, KA_WQKV, KA_WO, KA_BX, KA_WIN, KA_WSP, KA_BSP, KA_WOUT, KA_GATE, KA_OUT, KA_DBG, KA_WS = [8 * i for i in range(12)]

WS_ACT = 0x0000000
WS_H1 = 0x0C00000
WS_Z2N = 0x1400000
WS_GATE = 0x1C00000
WS_STATS = 0x1C10000
WS_PROF = 0x1D00000
SZ_ACT = 64 * 88 * 2048
SZ_H1 = 64 * 112 * 1024
SZ_Z2N = 112 * 65536
SZ_GATE = 2048 * 4
SZ_STATS = 16 * 28 * 1024

SRD3 = "0x20000"


def srd_from(a, dst, ptr, size, off=0):
    if off:
        a(f"s_add_u32 s{dst}, s{ptr}, {off:#x}")
        a(f"s_addc_u32 s{dst + 1}, s{ptr + 1}, 0")
    else:
        a(f"s_mov_b32 s{dst}, s{ptr}")
        a(f"s_mov_b32 s{dst + 1}, s{ptr + 1}")
    if isinstance(size, str):
        a(f"s_mov_b32 s{dst + 2}, {size}")
    else:
        a(f"s_mov_b32 s{dst + 2}, {size:#x}")
    a(f"s_mov_b32 s{dst + 3}, {SRD3}")


def kernel_head(a, name):
    a.raw(".text")
    a.raw(f".globl {name}")
    a.raw(".p2align 8")
    a.raw(f".type {name},@function")
    a.raw(f"{name}:")


def kernel_desc(name, nfv=512, acc=256):
    return f""".section .rodata,"a"
.p2align 6
.amdhsa_kernel {name}
  .amdhsa_next_free_vgpr {nfv}
  .amdhsa_next_free_sgpr 102
  .amdhsa_accum_offset {acc}
  .amdhsa_group_segment_fixed_size 0
  .amdhsa_kernarg_size 96
  .amdhsa_user_sgpr_count 2
  .amdhsa_user_sgpr_kernarg_segment_ptr 1
  .amdhsa_system_sgpr_workgroup_id_x 1
  .amdhsa_float_denorm_mode_32 3
.end_amdhsa_kernel
"""


class Slots:
    def __init__(self, n, cap=1):
        self.n = n
        self.cap = cap
        self.gaps = [[] for _ in range(n)]

    def put(self, item, want):
        p = max(0, min(want, self.n - 1))
        cap = self.cap
        while True:
            for q in range(p, self.n):
                if len(self.gaps[q]) < cap:
                    self.gaps[q].append(item)
                    return q
            cap += 1

    def chain(self, items, start, stride=1):
        last = -1
        pos = float(start)
        out = []
        for it in items:
            want = max(int(pos), last + 1)
            if want >= self.n:
                self.gaps[self.n - 1].append(it)
                last = self.n - 1
            else:
                last = self.put(it, want)
            out.append(last)
            pos += stride
        return out

    def emit(self, main):
        out = []
        for m, g in zip(main, self.gaps):
            out.append(m)
            for f in g:
                if isinstance(f, (list, tuple)):
                    out.extend(f)
                else:
                    out.append(f)
        return out


GELU_C0 = -2.0 * 0.7978845608028654 * 1.4426950408889634
GELU_C1 = GELU_C0 * 0.044715


def gelu_pairs(xs, ts, vk):
    o = []
    for x, t in zip(xs, ts):
        o.append(f"v_pk_mul_f32 {vr(t, 2)}, {vr(x, 2)}, {vr(x, 2)}")
    for x, t in zip(xs, ts):
        o.append(f"v_pk_fma_f32 {vr(t, 2)}, {vr(t, 2)}, {vr(vk, 2)}, {vr(vk, 2)} op_sel:[0,0,1] op_sel_hi:[1,0,1]")
    for x, t in zip(xs, ts):
        o.append(f"v_pk_mul_f32 {vr(t, 2)}, {vr(t, 2)}, {vr(x, 2)}")
    for x, t in zip(xs, ts):
        o.append(f"v_exp_f32 v{t}, v{t}")
        o.append(f"v_exp_f32 v{t + 1}, v{t + 1}")
    for x, t in zip(xs, ts):
        o.append(f"v_pk_add_f32 {vr(t, 2)}, {vr(t, 2)}, 1.0 op_sel_hi:[1,0]")
    for x, t in zip(xs, ts):
        o.append(f"v_rcp_f32 v{t}, v{t}")
        o.append(f"v_rcp_f32 v{t + 1}, v{t + 1}")
    for x, t in zip(xs, ts):
        o.append(f"v_pk_mul_f32 {vr(x, 2)}, {vr(x, 2)}, {vr(t, 2)}")
    return o


def mfma(d, a_, b_, c=None):
    c = d if c is None else c
    return f"v_mfma_f32_16x16x32_bf16 {d}, {a_}, {b_}, {c}"


class Prof:
    def __init__(self, on, base_sgpr=80, slot=0):
        self.on = on
        self.base = base_sgpr
        self.n = 0
        self.slot = slot

    def stamp(self, a):
        if not self.on:
            return
        r = self.base + 2 * self.n
        assert r + 1 < 100
        a(f"s_memrealtime s[{r}:{r + 1}]")
        self.n += 1

    def flush(self, a, ws_srd, s_wg, s_wave, vt):
        if not self.on:
            return
        a("s_waitcnt lgkmcnt(0)")
        a(f"s_lshl_b32 s78, {s_wg}, 2\ns_add_u32 s78, s78, {s_wave}\ns_lshl_b32 s78, s78, 6")
        a(f"s_add_u32 s78, s78, {WS_PROF + self.slot * 65536:#x}")
        for i in range(self.n):
            a(f"v_mov_b32 v{vt}, s{self.base + 2 * i}")
            a(f"v_mov_b32 v{vt + 1}, {4 * i}")
            a(f"buffer_store_dword v{vt}, v{vt + 1}, {sr(ws_srd, 4)}, s78 offen")
            a("s_waitcnt vmcnt(0)")
```

```python
from common import *

XS = 34816
WS0 = 3 * XS
WSZ = 28672
GATE_LDS = WS0 + 2 * WSZ

S_X, S_W, S_E, S_WS, S_DBG = 4, 8, 12, 16, 20
S_WAVE, S_RB, S_PAR, S_T0 = 24, 25, 26, 27
S_KX, S_KW, S_KE = 28, 29, 30
S_XF, S_WF, S_EOFF, S_HOFF = 32, 33, 34, 35
S_J, S_D0, S_D1, S_D2, S_DW = 36, 37, 38, 39, 40
S_T = 41
S_HALF, S_CH = 50, 51
S_XSZ, S_WSZ, S_ESZ = 52, 53, 54
S_PTR = 56
P_X, P_WQKV, P_WO, P_BX, P_WIN, P_WSP, P_BSP, P_WOUT, P_GATE, P_OUT = [S_PTR + 2 * i for i in range(10)]
P_DBG, P_WS = 76, 78

ACC = 16
V_XD, V_HD, V_WD, V_ED = 224, 232, 233, 239
V_XA0, V_XA1, V_HA0, V_HA1, V_WA, V_EA = 240, 241, 242, 243, 244, 250
SET = [0, 64]
F_X, F_H, F_W, F_E = 0, 32, 36, 60
A_EX = 128


def load_kernargs(a):
    a(f"s_load_dwordx16 s[{S_PTR}:{S_PTR + 15}], s[0:1], 0")
    a(f"s_load_dwordx4 s[{S_PTR + 16}:{S_PTR + 19}], s[0:1], 64")
    a(f"s_load_dwordx4 s[{P_DBG}:{P_DBG + 3}], s[0:1], 80")


def mfma_list(typ, s):
    fx = lambda tb: ar(s + F_X + 4 * tb, 4)
    fh = ar(s + F_H, 4)
    fw = lambda b: ar(s + F_W + 4 * b, 4)
    fe = ar(s + F_E, 4)
    o = []
    for tb in range(8):
        if typ == "A":
            for c in range(2):
                o.append(mfma(vr(ACC + (tb * 2 + c) * 4, 4), fw(c), fx(tb)))
            for c in range(2):
                o.append(mfma(vr(ACC + 64 + (tb * 2 + c) * 4, 4), fw(2 + c), fx(tb)))
            for c in range(2):
                o.append(mfma(vr(ACC + 136 + (tb * 2 + c) * 4, 4), fx(tb), fw(4 + c)))
            o.append(mfma(ar(A_EX + tb * 4, 4), fe, fx(tb)))
        elif typ == "Z":
            for c in range(4):
                o.append(mfma(vr(ACC + (tb * 4 + c) * 4, 4), fw(c), fx(tb)))
            for c in range(2):
                o.append(mfma(vr(ACC + 128 + (tb * 2 + c) * 4, 4), fw(4 + c), fx(tb)))
        else:
            for c in range(6):
                o.append(mfma(vr(ACC + (tb * 6 + c) * 4, 4), fw(c), fx(tb)))
            o.append(mfma(ar(A_EX + tb * 4, 4), fe, fx(tb)))
    if typ == "A":
        for c in range(2):
            o.append(mfma(vr(ACC + 64 + (16 + c) * 4, 4), fw(2 + c), fh))
        for c in range(2):
            o.append(mfma(vr(ACC + 136 + (16 + c) * 4, 4), fh, fw(4 + c)))
    return o


def frag_reads(typ, kk):
    s = SET[kk]
    xa = V_XA1 if kk else V_XA0
    ha = V_HA1 if kk else V_HA0
    xs = [f"ds_read_b128 {ar(s + F_X + 4 * tb, 4)}, v{xa} offset:{tb * 2048}" for tb in range(8)]
    ws = []
    for b in range(6):
        for h in range(2):
            ws.append(f"ds_read_b64_tr_b16 {ar(s + F_W + 4 * b + 2 * h, 2)}, v{V_WA + b} offset:{kk * 12288 + h * 1536}")
    if typ == "A":
        for h in range(2):
            ws.append(f"ds_read_b64_tr_b16 {ar(s + F_E + 2 * h, 2)}, v{V_EA} offset:{kk * 2048 + h * 256}")
        xs.append(f"ds_read_b128 {ar(s + F_H, 4)}, v{ha}")
    elif typ == "Y":
        ws.append(f"ds_read_b128 {ar(s + F_E, 4)}, v{V_EA} offset:{kk * 64}")
    return [xs[0]] + ws + xs[1:]


def dma_x(typ):
    o = []
    for grp in range(2):
        o.append(f"s_add_u32 m0, s{S_XF}, {grp * 4096}" if grp else f"s_mov_b32 m0, s{S_XF}")
        for q in range(4):
            off = f" offset:{q * 1024}" if q else ""
            o.append(f"buffer_load_dwordx4 v{V_XD + grp * 4 + q}, {sr(S_X, 4)}, s{S_KX} offen{off} lds")
    if typ == "A":
        o.append(f"s_add_u32 m0, s{S_XF}, s{S_HOFF}")
        o.append(["s_mov_b32 exec_hi, 0",
                  f"buffer_load_dwordx4 v{V_HD}, {sr(S_X, 4)}, s{S_KX} offen lds",
                  "s_mov_b32 exec_hi, -1"])
    return o


def dma_w(typ):
    o = [f"s_mov_b32 m0, s{S_WF}"]
    for q in range(4):
        off = f" offset:{q * 1024}" if q else ""
        o.append(f"buffer_load_dwordx4 v{V_WD + q}, {sr(S_W, 4)}, s{S_KW} offen{off} lds")
    o.append(f"s_add_u32 m0, s{S_WF}, 4096")
    for q in range(2):
        off = f" offset:{q * 1024}" if q else ""
        o.append(f"buffer_load_dwordx4 v{V_WD + 4 + q}, {sr(S_W, 4)}, s{S_KW} offen{off} lds")
    if typ == "A":
        o.append(f"s_add_u32 m0, s{S_WF}, s{S_EOFF}")
        o.append(f"buffer_load_dwordx4 v{V_ED}, {sr(S_E, 4)}, s{S_KE} offen lds")
    return o


def flat(items):
    o = []
    for it in items:
        if isinstance(it, (list, tuple)):
            o.extend(it)
        else:
            o.append(it)
    return o


def setup(a, typ, tag):
    T = S_T
    t0, t1, t2, t3, t4, t5 = 200, 201, 202, 203, 204, 205
    stride = 6144 if typ == "A" else 7168
    a(f"v_lshrrev_b32 v{t0}, 3, v0")
    a(f"v_and_b32 v{t1}, 7, v0")
    a(f"v_lshrrev_b32 v{t2}, 1, v{t0}")
    a(f"v_xor_b32 v{t3}, v{t1}, v{t2}")
    a(f"v_xor_b32 v{t4}, 4, v{t3}")
    a(f"v_lshlrev_b32 v{t0}, 12, v{t0}")
    a(f"v_lshl_add_u32 v{t3}, v{t3}, 4, v{t0}")
    a(f"v_lshl_add_u32 v{t4}, v{t4}, 4, v{t0}")
    a(f"s_lshl_b32 s{T}, s{S_WAVE}, 6\ns_add_u32 s{T}, s{T}, s{S_T0}\ns_lshl_b32 s{T}, s{T}, 11")
    for i in range(8):
        tok = 32 * (i >> 2) + 16 * (i & 1) + ((i >> 1) & 1)
        a(f"s_add_u32 s{T + 1}, s{T}, {tok * 2048 - (i & 3) * 1024}")
        a(f"v_add_u32 v{V_XD + i}, s{T + 1}, v{t4 if i & 1 else t3}")
    srd_from(a, S_X, P_X, 2048 * 2048)
    a(f"s_mov_b32 s{S_XSZ}, {2048 * 2048}")
    if typ == "A":
        a(f"v_lshrrev_b32 v{t0}, 3, v0\nv_and_b32 v{t0}, 3, v{t0}")
        a(f"s_lshl_b32 s{T}, s{S_WAVE}, 2")
        a(f"v_add_u32 v{t0}, s{T}, v{t0}")
        a(f"v_and_b32 v{t2}, 7, v{t0}\nv_lshlrev_b32 v{t2}, 1, v{t2}")
        a(f"v_lshrrev_b32 v{t3}, 3, v{t0}\nv_add_u32 v{t2}, v{t2}, v{t3}")
        a(f"s_sub_u32 s{T}, s{S_T0}, 16\nv_add_u32 v{t2}, s{T}, v{t2}\nv_max_i32 v{t2}, 0, v{t2}")
        a(f"v_lshrrev_b32 v{t0}, 1, v{t0}\nv_xor_b32 v{t0}, v{t1}, v{t0}\nv_lshlrev_b32 v{t0}, 4, v{t0}")
        a(f"v_lshl_add_u32 v{V_HD}, v{t2}, 11, v{t0}")
        a(f"s_mul_i32 s{T}, s{S_WAVE}, {8192 - 512}\ns_sub_u32 s{S_HOFF}, 32768, s{T}")
    a(f"s_lshl_b32 s{S_XF}, s{S_WAVE}, 13\ns_mov_b32 s{S_KX}, 0")
    a(flat(dma_x(typ)))
    if typ == "A":
        a(f"s_lshl_b32 s{T}, s{S_PAR}, 7\ns_movk_i32 s{T + 1}, 2048\ns_add_u32 s{T + 2}, s{T}, 4096")
        srd_from(a, S_W, P_WQKV, 1024 * 6144)
    elif typ == "Z":
        a(f"s_lshl_b32 s{T}, s{S_PAR}, 8\ns_add_u32 s{T}, s{T}, 3584\ns_movk_i32 s{T + 1}, 128")
        a(f"s_lshl_b32 s{T + 2}, s{S_PAR}, 7\ns_add_u32 s{T + 2}, s{T + 2}, 1024")
        srd_from(a, S_W, P_WIN, 1024 * 7168)
    else:
        a(f"s_mul_i32 s{T}, s{S_PAR}, 384\ns_add_u32 s{T}, s{T}, 2816\ns_movk_i32 s{T + 1}, 128\ns_add_u32 s{T + 2}, s{T}, 256")
        srd_from(a, S_W, P_WIN, 1024 * 7168)
    a(f"s_mov_b32 s{S_WSZ}, {1024 * stride}")
    a(f"s_mul_i32 s{T + 3}, s{S_WAVE}, 384\ns_movk_i32 s{T + 4}, 2731\ns_movk_i32 s{T + 5}, {stride}")
    a(f"v_mov_b32 v{t5}, s{T}")
    for i in range(6):
        a(f"s_add_u32 s{T + 6}, s{T + 3}, {64 * i}")
        a(f"v_add_u32 v{t0}, s{T + 6}, v0")
        a(f"v_mul_u32_u24 v{t1}, s{T + 4}, v{t0}\nv_lshrrev_b32 v{t1}, 16, v{t1}")
        a(f"v_mul_u32_u24 v{t2}, 24, v{t1}\nv_sub_u32 v{t0}, v{t0}, v{t2}")
        a(f"v_lshrrev_b32 v{t2}, 3, v{t0}\nv_and_b32 v{t0}, 7, v{t0}")
        a(f"v_and_b32 v{t3}, 2, v{t1}\nv_lshrrev_b32 v{t4}, 1, v{t1}\nv_and_b32 v{t4}, 4, v{t4}")
        a(f"v_or_b32 v{t3}, v{t3}, v{t4}\nv_xor_b32 v{t0}, v{t0}, v{t3}")
        a(f"v_mad_u32_u24 v{t3}, v{t2}, s{T + 1}, v{t5}")
        a(f"v_cmp_eq_u32 vcc, 2, v{t2}\nv_mov_b32 v{t4}, s{T + 2}\nv_cndmask_b32 v{t3}, v{t3}, v{t4}, vcc")
        a(f"v_mad_u32_u24 v{t3}, v{t1}, s{T + 5}, v{t3}")
        a(f"v_lshl_add_u32 v{t3}, v{t0}, 4, v{t3}")
        imm = (i if i < 4 else i - 4) * 1024
        if imm:
            a(f"v_subrev_u32 v{V_WD + i}, {imm}, v{t3}")
        else:
            a(f"v_mov_b32 v{V_WD + i}, v{t3}")
    if typ == "A":
        srd_from(a, S_E, P_WIN, 1024 * 7168)
        a(f"s_mov_b32 s{S_ESZ}, {1024 * 7168}")
        a(f"v_lshrrev_b32 v{t0}, 2, v0\ns_lshl_b32 s{T}, s{S_WAVE}, 4\nv_add_u32 v{t0}, s{T}, v{t0}")
        a(f"v_and_b32 v{t1}, 3, v0\nv_lshrrev_b32 v{t2}, 2, v{t0}\nv_and_b32 v{t2}, 2, v{t2}\nv_xor_b32 v{t1}, v{t1}, v{t2}")
        a(f"s_lshl_b32 s{T}, s{S_PAR}, 6\nv_lshl_add_u32 v{t1}, v{t1}, 4, s{T}")
        a(f"s_movk_i32 s{T}, 7168\nv_mad_u32_u24 v{V_ED}, v{t0}, s{T}, v{t1}")
        a(f"s_mul_i32 s{T}, s{S_WAVE}, {6144 - 1024}\ns_sub_u32 s{S_EOFF}, 24576, s{T}")
        a(f"s_mov_b32 s{S_KE}, 0")
    a(f"s_mul_i32 s{S_WF}, s{S_WAVE}, 6144\ns_add_u32 s{S_WF}, s{S_WF}, {WS0}\ns_mov_b32 s{S_KW}, 0")
    a(flat(dma_w(typ)))
    if typ == "Y":
        srd_from(a, S_E, P_GATE, 2048)
        a(f"s_lshl_b32 s{T}, s{S_WAVE}, 9\ns_add_u32 m0, s{T}, {GATE_LDS}")
        a(f"v_lshl_add_u32 v{t0}, v0, 4, s{T}")
        a(f"s_mov_b32 exec_hi, 0\nbuffer_load_dwordx4 v{t0}, {sr(S_E, 4)}, 0 offen lds\ns_mov_b32 exec_hi, -1")
    a(f"s_add_u32 s{S_XF}, s{S_XF}, {XS}\ns_movk_i32 s{S_KX}, 128")
    a(flat(dma_x(typ)))
    a(f"s_add_u32 s{S_WF}, s{S_WF}, {WSZ}\ns_mov_b32 s{S_KW}, {64 * stride}")
    if typ == "A":
        a(f"s_mov_b32 s{S_KE}, {64 * 7168}")
    a(flat(dma_w(typ)))
    a(f"s_add_u32 s{S_XF}, s{S_XF}, {XS}\ns_movk_i32 s{S_KX}, 256")
    a(f"s_sub_u32 s{S_WF}, s{S_WF}, {WSZ}\ns_mov_b32 s{S_KW}, {128 * stride}")
    if typ == "A":
        a(f"s_mov_b32 s{S_KE}, {128 * 7168}")
    n, g, r, c = 206, 207, 208, 209
    a(f"v_and_b32 v{n}, 15, v0\nv_lshrrev_b32 v{g}, 4, v0\nv_bfe_u32 v{r}, v0, 2, 2\nv_and_b32 v{c}, 3, v0")
    a(f"v_lshrrev_b32 v{t0}, 1, v{n}\nv_xor_b32 v{t0}, v{g}, v{t0}\nv_lshlrev_b32 v{t0}, 4, v{t0}")
    a(f"v_lshl_add_u32 v{t0}, v{n}, 7, v{t0}")
    a(f"s_lshl_b32 s{T}, s{S_HALF}, 14")
    a(f"v_add_u32 v{V_XA0}, s{T}, v{t0}\nv_xor_b32 v{V_XA1}, 64, v{V_XA0}")
    if typ == "A":
        a(f"v_and_b32 v{t0}, 7, v{n}\nv_lshrrev_b32 v{t1}, 3, v{n}\nv_lshl_add_u32 v{t0}, v{t1}, 4, v{t0}\nv_add_u32 v{t0}, 104, v{t0}")
        a(f"v_add_u32 v{t1}, 256, v{n}")
        a(f"s_cmp_eq_u32 s{S_HALF}, 0\ns_cselect_b64 vcc, -1, 0\nv_cndmask_b32 v{t0}, v{t0}, v{t1}, vcc")
        a(f"v_bfe_u32 v{t1}, v{t0}, 1, 3\nv_xor_b32 v{t1}, v{g}, v{t1}\nv_lshlrev_b32 v{t1}, 4, v{t1}")
        a(f"v_lshl_add_u32 v{V_HA0}, v{t0}, 7, v{t1}\nv_xor_b32 v{V_HA1}, 64, v{V_HA0}")
    a(f"v_lshl_add_u32 v{t0}, v{g}, 3, v{r}")
    a(f"v_lshrrev_b32 v{t1}, 1, v{r}\nv_and_b32 v{t2}, 1, v{g}\nv_lshl_or_b32 v{t1}, v{t2}, 1, v{t1}")
    a(f"s_movk_i32 s{T}, 384\nv_lshlrev_b32 v{t3}, 3, v{c}\nv_mad_u32_u24 v{t3}, v{t0}, s{T}, v{t3}\nv_add_u32 v{t3}, {WS0}, v{t3}")
    for b in range(6):
        if typ == "A":
            a(f"s_lshl_b32 s{T}, s{S_CH}, 1\ns_add_u32 s{T}, s{T}, {4 * (b >> 1) + (b & 1)}")
        elif typ == "Z":
            if b < 4:
                a(f"s_lshl_b32 s{T}, s{S_CH}, 2\ns_add_u32 s{T}, s{T}, {b}")
            else:
                a(f"s_lshl_b32 s{T}, s{S_CH}, 1\ns_add_u32 s{T}, s{T}, {8 + b - 4}")
        else:
            a(f"s_mul_i32 s{T}, s{S_CH}, 6\ns_add_u32 s{T}, s{T}, {b}")
        a(f"v_xor_b32 v{t4}, s{T}, v{t1}\nv_lshl_add_u32 v{V_WA + b}, v{t4}, 5, v{t3}")
    if typ == "A":
        a(f"v_xor_b32 v{t4}, s{S_CH}, v{t2}\nv_lshlrev_b32 v{t4}, 5, v{t4}\nv_lshl_add_u32 v{t4}, v{t0}, 6, v{t4}")
        a(f"v_lshl_add_u32 v{t4}, v{c}, 3, v{t4}\nv_add_u32 v{V_EA}, {WS0 + 24576}, v{t4}")
        a(f"v_lshlrev_b32 v{t0}, 2, v{g}\nv_sub_u32 v{t0}, v{n}, v{t0}")
        a(f"v_lshlrev_b32 v{t5}, 2, v{g}")
        a(f"s_mov_b32 s{T}, {f2u(-1e9 * 32 ** 0.5):#x}\nv_mov_b32 v{t4}, s{T}")
        a(f"s_lshl_b32 s{T + 1}, s{S_HALF}, 7\ns_add_u32 s{T + 1}, s{T + 1}, s{S_T0}\ns_cmp_eq_u32 s{T + 1}, 0")
        a(f"s_cselect_b32 s{T + 1}, 0, -1\ns_mov_b32 s{T + 2}, s{T + 1}\ns_mov_b32 s{T + 3}, s{T + 1}")
        hm = T + 2
        assert hm % 2 == 1
        hm = T + 3
        a(f"s_mov_b32 s{hm + 1}, s{T + 1}")
        assert hm % 2 == 0
        for i in range(4):
            a(f"v_subrev_u32 v{t1}, {i}, v{t0}")
            a(f"v_cmp_gt_u32 vcc, 8, v{t1}\nv_cndmask_b32 v{i}, v{t4}, 0, vcc")
            a(f"v_cmp_ge_i32 vcc, -9, v{t1}\nv_cndmask_b32 v{4 + i}, v{t4}, 0, vcc")
            a(f"s_and_b64 vcc, vcc, {sr(hm, 2)}\nv_cndmask_b32 v{12 + i}, v{t4}, 0, vcc")
            a(f"v_cmp_ge_i32 vcc, -1, v{t1}\nv_add_u32 v{t2}, {i}, v{t5}\nv_cmp_gt_u32 {sr(T + 5, 2)}, 8, v{t2}")
            a(f"s_and_b64 vcc, vcc, {sr(T + 5, 2)}\ns_and_b64 vcc, vcc, {sr(hm, 2)}\nv_cndmask_b32 v{8 + i}, v{t4}, 0, vcc")
    elif typ == "Y":
        a(f"v_lshlrev_b32 v{t4}, 4, v{g}\nv_add_u32 v{V_EA}, {GATE_LDS}, v{t4}")
    nacc = {"A": 208, "Z": 192, "Y": 192}[typ]
    for i in range(nacc):
        a(f"v_mov_b32 v{ACC + i}, 0")
    if typ != "Z":
        for i in range(32):
            a(f"v_accvgpr_write_b32 a{A_EX + i}, 0")
    a(f"s_mov_b32 s{S_J}, 0\ns_mov_b32 s{S_D0}, {XS}\ns_mov_b32 s{S_D1}, {XS}\ns_mov_b32 s{S_D2}, {-2 * XS}\ns_mov_b32 s{S_DW}, {WSZ}")


def mainloop(a, typ, tag, prof):
    nx = 9 if typ == "A" else 8
    nw = 7 if typ == "A" else 6
    stride = 6144 if typ == "A" else 7168
    a(f"s_waitcnt vmcnt({nx + nw})\ns_barrier")
    prof.stamp(a)
    a(frag_reads(typ, 0))
    a("s_waitcnt lgkmcnt(0)")
    a.label(f"L_{tag}_loop")
    m = mfma_list(typ, SET[0])
    N = len(m)
    sl = Slots(N)
    dx = dma_x(typ)
    sl.chain(dx, 1, (N - 12) / len(dx))
    last = sl.chain(frag_reads(typ, 1), 0, 1)[-1]
    upd = [f"v_add_u32 v{V_XA1}, s{S_D0}, v{V_XA1}", f"v_add_u32 v{V_XA0}, s{S_D0}, v{V_XA0}"]
    if typ == "A":
        upd += [f"v_add_u32 v{V_HA1}, s{S_D0}, v{V_HA1}", f"v_add_u32 v{V_HA0}, s{S_D0}, v{V_HA0}",
                f"v_add_u32 v{V_EA}, s{S_DW}, v{V_EA}"]
    elif typ == "Y":
        upd += [f"v_add_u32 v{V_EA}, 128, v{V_EA}"]
    upd += [f"v_add_u32 v{V_WA + b}, s{S_DW}, v{V_WA + b}" for b in range(6)]
    sl.chain(upd, last + 1, 1)
    a(sl.emit(m))
    a(f"s_waitcnt vmcnt({nx}) lgkmcnt(0)\ns_barrier")
    m = mfma_list(typ, SET[1])
    sl = Slots(N)
    dw = dma_w(typ)
    lastw = sl.chain(dw, 0, (N * 0.6) / len(dw))[-1]
    last = sl.chain(frag_reads(typ, 0), 0, 1)[-1]
    book = [f"s_add_u32 s{S_XF}, s{S_XF}, s{S_D2}", f"s_add_u32 s{S_KX}, s{S_KX}, 128",
            f"s_add_u32 s{S_WF}, s{S_WF}, s{S_DW}", f"s_add_u32 s{S_KW}, s{S_KW}, {64 * stride}"]
    if typ == "A":
        book.append(f"s_add_u32 s{S_KE}, s{S_KE}, {64 * 7168}")
    book += [f"s_sub_u32 s{S_DW}, 0, s{S_DW}", f"s_mov_b32 s{S_T}, s{S_D0}", f"s_mov_b32 s{S_D0}, s{S_D1}",
             f"s_mov_b32 s{S_D1}, s{S_D2}", f"s_mov_b32 s{S_D2}, s{S_T}", f"s_add_u32 s{S_J}, s{S_J}, 1"]
    tail = [f"s_cmp_lt_u32 s{S_J}, 14", f"s_cselect_b32 s{S_X + 2}, s{S_XSZ}, 0", f"s_cselect_b32 s{S_W + 2}, s{S_WSZ}, 0"]
    if typ == "A":
        tail.append(f"s_cselect_b32 s{S_E + 2}, s{S_ESZ}, 0")
    book += tail
    book.append(f"s_cmp_lt_u32 s{S_J}, 16")
    sl.chain(book, max(lastw, last) + 1, 1)
    a(sl.emit(m))
    a("s_waitcnt lgkmcnt(0)")
    a(f"s_cbranch_scc1 L_{tag}_loop")
    prof.stamp(a)


def lane16(a, v):
    a(f"v_mbcnt_lo_u32_b32 v{v}, -1, 0\nv_mbcnt_hi_u32_b32 v{v}, -1, v{v}")


def poll(a, label, vdat, vzero, soff, target):
    T = S_T
    a(f"s_mov_b32 s{T + 1}, 0")
    a.label(label)
    a(f"buffer_load_dword v{vdat}, v{vzero}, {sr(S_DBG, 4)}, {soff} offen sc1")
    a(f"s_add_u32 s{T + 1}, s{T + 1}, 1\ns_cmp_ge_u32 s{T + 1}, 0x100000\ns_cbranch_scc1 {label}_out")
    a(f"s_waitcnt vmcnt(0)\nv_readfirstlane_b32 s{T}, v{vdat}\ns_cmp_lt_u32 s{T}, {target}\ns_cbranch_scc1 {label}")
    a.label(label + "_out")
    a("s_waitcnt vmcnt(0)")


def h1_stores(a, blocks, vaddr, tmp, s_fb0, sflags=""):
    T = S_T
    ncol = len(blocks[0])
    a(f"s_lshl_b32 s{T}, s{S_RB}, 3\ns_lshl_b32 s{T + 1}, s{S_HALF}, 2\ns_add_u32 s{T}, s{T}, s{T + 1}")
    a(f"s_mul_i32 s{T}, s{T}, 112\ns_add_u32 s{T}, s{T}, {s_fb0}\ns_lshl_b32 s{T}, s{T}, 10\ns_add_u32 s{T}, s{T}, {WS_H1:#x}")
    k = 0
    for i in range(4):
        for c in range(ncol):
            t = tmp[k % len(tmp)]
            k += 1
            srcs = []
            for par in range(2):
                b = blocks[2 * i + par][c]
                if isinstance(b, tuple):
                    u = tmp[k % len(tmp)]
                    k += 1
                    for e in range(4):
                        a(f"v_accvgpr_read_b32 v{u + e}, a{b[1] + e}")
                    b = u
                srcs.append(b)
            for par in range(2):
                a(f"v_cvt_pk_bf16_f32 v{t + 2 * par}, v{srcs[par]}, v{srcs[par] + 1}")
                a(f"v_cvt_pk_bf16_f32 v{t + 2 * par + 1}, v{srcs[par] + 2}, v{srcs[par] + 3}")
            if c >= 4 and c % 4 == 0:
                a(f"s_add_u32 s{T + 1}, s{T}, {c * 1024}")
            so = T if c < 4 else T + 1
            off = f" offset:{(c % 4) * 1024}" if c % 4 else ""
            a(f"buffer_store_dwordx4 {vr(t, 4)}, v{vaddr}, {sr(S_WS, 4)}, s{so} offen{off} {sflags}")
        if i < 3:
            a(f"s_add_u32 s{T}, s{T}, {112 * 1024}")


def epilogue_A(a, prof, sflags=""):
    T = S_T
    Q, K, V = ACC, ACC + 64, ACC + 136
    VL = 224
    lane16(a, VL)
    a(f"v_lshlrev_b32 v{VL}, 4, v{VL}")
    a(f"s_lshl_b32 s{T + 8}, s{S_PAR}, 1\ns_add_u32 s{T + 8}, s{T + 8}, s{S_CH}")
    h1_stores(a, [[("a", A_EX + 4 * tb)] for tb in range(8)], VL, [228, 232, 236, 240, 244, 248], f"s{T + 8}", sflags)
    for i in range(32):
        a(f"v_cvt_pk_bf16_f32 v{Q + i}, v{Q + 2 * i}, v{Q + 2 * i + 1}")
    for i in range(36):
        a(f"v_cvt_pk_bf16_f32 v{K + i}, v{K + 2 * i}, v{K + 2 * i + 1}")
    varr = {(0, 0): Q + 32, (0, 1): Q + 42, (1, 0): Q + 52, (1, 1): K + 36}
    for par in range(2):
        for c in range(2):
            d = varr[(par, c)]
            for pos, tb in enumerate([8, par, par + 2, par + 4, par + 6]):
                s = V + (tb * 2 + c) * 4
                a(f"v_cvt_pk_bf16_f32 v{d + 2 * pos}, v{s}, v{s + 1}")
                a(f"v_cvt_pk_bf16_f32 v{d + 2 * pos + 1}, v{s + 2}, v{s + 3}")
    ONES = K + 48
    for i in range(4):
        a(f"v_mov_b32 v{ONES + i}, 0x3f803f80")
    cs = 32 ** -0.5 * 1.4426950408889634
    SC = T + 3
    assert SC % 2 == 0
    a(f"s_mov_b32 s{SC}, {f2u(cs):#x}\ns_mov_b32 s{SC + 1}, {f2u(cs):#x}")
    a(f"s_lshl_b32 s{T}, s{S_RB}, 3\ns_lshl_b32 s{T + 1}, s{S_HALF}, 2\ns_add_u32 s{T}, s{T}, s{T + 1}")
    a(f"s_mul_i32 s{T}, s{T}, 88\ns_add_u32 s{T}, s{T}, s{T + 8}\ns_lshl_b32 s{T}, s{T}, 11")
    if WS_ACT:
        a(f"s_add_u32 s{T}, s{T}, {WS_ACT:#x}")
    S, O, SM, MX = V, V + 32, 228, 244
    for batch in range(2):
        tbs = [4 * batch + i for i in range(4)]
        for i, tb in enumerate(tbs):
            prev = 8 if tb < 2 else tb - 2
            bias = (8 + 4 * tb) if tb < 2 else 4
            a(mfma(vr(S + 8 * i, 4), vr(K + 4 * prev, 4), vr(Q + 4 * tb, 4), vr(bias, 4)))
            a(mfma(vr(S + 8 * i + 4, 4), vr(K + 4 * tb, 4), vr(Q + 4 * tb, 4), vr(0, 4)))
        for step in range(4):
            for i in range(4):
                s, mx = S + 8 * i, MX + 2 * i
                if step == 0:
                    a(f"v_max3_f32 v{mx}, v{s}, v{s + 1}, v{s + 2}")
                elif step < 3:
                    a(f"v_max3_f32 v{mx}, v{mx}, v{s + 2 * step + 1}, v{s + 2 * step + 2}")
                else:
                    a(f"v_max_f32 v{mx}, v{mx}, v{s + 7}")
        for sw in ("v_permlane32_swap_b32", "v_permlane16_swap_b32"):
            for i in range(4):
                a(f"v_mov_b32 v{MX + 2 * i + 1}, v{MX + 2 * i}")
            for i in range(4):
                a(f"{sw} v{MX + 2 * i}, v{MX + 2 * i + 1}")
            for i in range(4):
                a(f"v_max_f32 v{MX + 2 * i}, v{MX + 2 * i}, v{MX + 2 * i + 1}")
        for i in range(4):
            a(f"v_mul_f32 v{MX + 2 * i}, {f2u(-cs):#x}, v{MX + 2 * i}")
        for i in range(4):
            for e in range(4):
                p = S + 8 * i + 2 * e
                a(f"v_pk_fma_f32 {vr(p, 2)}, {vr(p, 2)}, {sr(SC, 2)}, {vr(MX + 2 * i, 2)} op_sel_hi:[1,1,0]")
        for i in range(4):
            for e in range(8):
                a(f"v_exp_f32 v{S + 8 * i + e}, v{S + 8 * i + e}")
        for i in range(4):
            for e in range(4):
                a(f"v_cvt_pk_bf16_f32 v{S + 8 * i + e}, v{S + 8 * i + 2 * e}, v{S + 8 * i + 2 * e + 1}")
        for i, tb in enumerate(tbs):
            par, pos = tb & 1, tb >> 1
            a(mfma(vr(SM + 4 * i, 4), vr(ONES, 4), vr(S + 8 * i, 4), "0"))
            for c in range(2):
                a(mfma(vr(O + 8 * i + 4 * c, 4), vr(varr[(par, c)] + 2 * pos, 4), vr(S + 8 * i, 4), "0"))
        for i in range(4):
            a(f"v_rcp_f32 v{SM + 4 * i}, v{SM + 4 * i}")
        for i in range(4):
            for e in range(4):
                p = O + 8 * i + 2 * e
                a(f"v_pk_mul_f32 {vr(p, 2)}, {vr(p, 2)}, {vr(SM + 4 * i, 2)} op_sel_hi:[1,0]")
        for i, tb in enumerate(tbs):
            for e in range(4):
                a(f"v_cvt_pk_bf16_f32 v{O + 8 * i + e}, v{O + 8 * i + 2 * e}, v{O + 8 * i + 2 * e + 1}")
            off = f" offset:{(tb & 1) * 1024}" if tb & 1 else ""
            a(f"buffer_store_dwordx4 {vr(O + 8 * i, 4)}, v{VL}, {sr(S_WS, 4)}, s{T} offen{off} {sflags}")
            if tb & 1 and tb < 7:
                a(f"s_add_u32 s{T}, s{T}, {88 * 2048}")


def epilogue_Y(a, prof, sflags=""):
    T = S_T
    VL = 224
    lane16(a, VL)
    a(f"v_and_b32 v{VL + 1}, 15, v{VL}\nv_lshlrev_b32 v{VL}, 4, v{VL}")
    a(f"s_mul_i32 s{T + 8}, s{S_PAR}, 12\ns_mul_i32 s{T + 7}, s{S_CH}, 6\ns_add_u32 s{T + 8}, s{T + 8}, s{T + 7}\ns_add_u32 s{T + 8}, s{T + 8}, 88")
    h1_stores(a, [[ACC + (tb * 6 + c) * 4 for c in range(6)] for tb in range(8)], VL, [228, 232, 236, 240], f"s{T + 8}", sflags)
    G = 0
    for tb in range(8):
        a(f"v_accvgpr_read_b32 v{G + tb}, a{A_EX + 4 * tb}")
    for tb in range(8):
        a(f"v_mul_f32 v{G + tb}, {f2u(-1.4426950408889634):#x}, v{G + tb}")
    for tb in range(8):
        a(f"v_exp_f32 v{G + tb}, v{G + tb}")
    for tb in range(8):
        a(f"v_add_f32 v{G + tb}, 1.0, v{G + tb}")
    for tb in range(8):
        a(f"v_rcp_f32 v{G + tb}, v{G + tb}")
    a(f"v_lshlrev_b32 v{VL + 1}, 3, v{VL + 1}")
    a(f"s_lshl_b32 s{T}, s{S_HALF}, 7\ns_add_u32 s{T}, s{T}, s{S_T0}\ns_lshl_b32 s{T}, s{T}, 2\ns_add_u32 s{T}, s{T}, {WS_GATE:#x}")
    for i in range(4):
        off = f" offset:{i * 128}" if i else ""
        a(f"buffer_store_dwordx2 {vr(G + 2 * i, 2)}, v{VL + 1}, {sr(S_WS, 4)}, s{T} offen{off} {sflags}")


def epilogue_Z(a, tag, prof, sflags=""):
    T = S_T
    Z, H = ACC, ACC + 128
    VL, VK = 224, 226
    ST = 208
    lane16(a, VL)
    a(f"v_mov_b32 v{VK}, {f2u(GELU_C1):#x}\nv_mov_b32 v{VK + 1}, {f2u(GELU_C0):#x}")
    tmps = [228 + 2 * i for i in range(8)]
    SP, QP = 244, 246
    for tb in range(8):
        xs = [Z + tb * 16 + 2 * i for i in range(8)]
        a(gelu_pairs(xs, tmps, VK))
        a(f"v_pk_add_f32 {vr(SP, 2)}, {vr(xs[0], 2)}, {vr(xs[1], 2)}")
        a(f"v_pk_mul_f32 {vr(QP, 2)}, {vr(xs[0], 2)}, {vr(xs[0], 2)}")
        for i in range(1, 8):
            if i > 1:
                a(f"v_pk_add_f32 {vr(SP, 2)}, {vr(SP, 2)}, {vr(xs[i], 2)}")
            a(f"v_pk_fma_f32 {vr(QP, 2)}, {vr(xs[i], 2)}, {vr(xs[i], 2)}, {vr(QP, 2)}")
        a(f"v_add_f32 v{ST + tb}, v{SP}, v{SP + 1}\nv_add_f32 v{ST + 8 + tb}, v{QP}, v{QP + 1}")
    for i in range(8):
        a(f"v_permlane32_swap_b32 v{ST + i}, v{ST + 8 + i}")
    for i in range(8):
        a(f"v_add_f32 v{ST + i}, v{ST + i}, v{ST + 8 + i}")
    for i in range(4):
        a(f"v_permlane16_swap_b32 v{ST + i}, v{ST + 4 + i}")
    for i in range(4):
        a(f"v_add_f32 v{ST + i}, v{ST + i}, v{ST + 4 + i}")
    prof.stamp(a)
    a(f"v_lshlrev_b32 v{VL + 1}, 4, v{VL}")
    a(f"s_lshl_b32 s{T + 7}, s{S_RB}, 1\ns_add_u32 s{T + 7}, s{T + 7}, s{S_HALF}")
    a(f"s_mul_i32 s{T + 6}, s{T + 7}, 28\ns_lshl_b32 s{T + 6}, s{T + 6}, 10\ns_add_u32 s{T + 6}, s{T + 6}, {WS_STATS:#x}")
    a(f"s_lshl_b32 s{T + 5}, s{S_PAR}, 1\ns_add_u32 s{T + 5}, s{T + 5}, s{S_CH}\ns_lshl_b32 s{T + 5}, s{T + 5}, 10")
    a(f"s_add_u32 s{T + 5}, s{T + 5}, s{T + 6}")
    a(f"buffer_store_dwordx4 {vr(ST, 4)}, v{VL + 1}, {sr(S_WS, 4)}, s{T + 5} offen sc1")
    a(f"s_lshl_b32 s{T + 7}, s{T + 7}, 2\nv_mov_b32 v{228}, 0\nv_mov_b32 v{229}, 1")
    a("s_waitcnt vmcnt(0)")
    a(f"s_mov_b64 exec, 1\nbuffer_atomic_add v229, v228, {sr(S_DBG, 4)}, s{T + 7} offen sc1\ns_mov_b64 exec, -1")
    a(f"s_lshl_b32 s{T + 8}, s{S_PAR}, 2\ns_lshl_b32 s{T + 4}, s{S_CH}, 1\ns_add_u32 s{T + 8}, s{T + 8}, s{T + 4}\ns_add_u32 s{T + 8}, s{T + 8}, 32")
    h1_stores(a, [[H + (tb * 2 + c) * 4 for c in range(2)] for tb in range(8)], VL + 1, [232, 236, 240, 244], f"s{T + 8}", sflags)
    poll(a, f"L_{tag}_poll", 229, 228, f"s{T + 7}", 28)
    prof.stamp(a)
    a(f"s_mul_i32 s{T}, s{S_CH}, {14 * 1024}\ns_add_u32 s{T + 6}, s{T + 6}, s{T}")
    for i in range(14):
        if i and i % 4 == 0:
            a(f"s_add_u32 s{T + 6}, s{T + 6}, 4096")
        off = f" offset:{(i % 4) * 1024}" if i % 4 else ""
        a(f"buffer_load_dwordx4 {vr(H + 4 * i, 4)}, v{VL + 1}, {sr(S_WS, 4)}, s{T + 6} offen{off} sc1")
    for i in range(1, 14):
        a(f"s_waitcnt vmcnt({13 - i})")
        a(f"v_pk_add_f32 {vr(H, 2)}, {vr(H, 2)}, {vr(H + 4 * i, 2)}")
        a(f"v_pk_add_f32 {vr(H + 2, 2)}, {vr(H + 2, 2)}, {vr(H + 4 * i + 2, 2)}")
    a(f"s_lshl_b32 s{T}, s{S_WAVE}, 10\nv_add_u32 v228, s{T}, v{VL + 1}")
    a(f"ds_write_b128 v228, {vr(H, 4)}")
    a(f"v_and_b32 v229, 15, v{VL}\nv_lshlrev_b32 v228, 4, v229\ns_lshl_b32 s{T}, s{S_HALF}, 11\nv_add_u32 v228, s{T}, v228")
    a("s_waitcnt lgkmcnt(0)\ns_barrier")
    for ch in range(2):
        for ro in range(4):
            a(f"ds_read_b128 {vr(H + 16 * ch + 4 * ro, 4)}, v228 offset:{ch * 1024 + ro * 256}")
    a(f"v_bfe_u32 v230, v{VL}, 4, 1\nv_and_b32 v231, 1, v229\nv_lshl_or_b32 v230, v231, 1, v230")
    a(f"v_bfe_u32 v231, v229, 2, 1\nv_lshl_or_b32 v230, v231, 2, v230\nv_bfe_u32 v231, v229, 1, 1\nv_lshl_or_b32 v230, v231, 3, v230")
    a(f"v_lshrrev_b32 v231, 3, v229\nv_lshl_or_b32 v230, v231, 4, v230\nv_lshlrev_b32 v230, 5, v230")
    a(f"v_lshrrev_b32 v231, 5, v{VL}\nv_lshl_or_b32 v230, v231, 4, v230")
    a(f"s_lshl_b32 s{T}, s{S_PAR}, 3\ns_lshl_b32 s{T + 1}, s{S_CH}, 2\ns_add_u32 s{T}, s{T}, s{T + 1}\ns_lshl_b32 s{T}, s{T}, 16")
    a(f"s_lshl_b32 s{T + 1}, s{S_HALF}, 7\ns_add_u32 s{T + 1}, s{T + 1}, s{S_T0}\ns_lshl_b32 s{T + 1}, s{T + 1}, 5")
    a(f"s_add_u32 s{T}, s{T}, s{T + 1}\ns_add_u32 s{T}, s{T}, {WS_Z2N:#x}")
    a("s_waitcnt lgkmcnt(0)")
    for i in range(8):
        a(f"v_pk_add_f32 {vr(H + 2 * i, 2)}, {vr(H + 2 * i, 2)}, {vr(H + 16 + 2 * i, 2)}")
    a(f"s_mov_b32 s{T + 3}, {f2u(1.0 / 1792):#x}\ns_mov_b32 s{T + 4}, {f2u(1.0 / 1792):#x}")
    for i in range(8):
        a(f"v_pk_mul_f32 {vr(H + 2 * i, 2)}, {vr(H + 2 * i, 2)}, {sr(T + 3, 2)}")
    for tb in range(8):
        a(f"v_fma_f32 v{H + 8 + tb}, -v{H + tb}, v{H + tb}, v{H + 8 + tb}")
    for tb in range(8):
        a(f"v_max_f32 v{H + 8 + tb}, 0, v{H + 8 + tb}")
    for tb in range(8):
        a(f"v_add_f32 v{H + 8 + tb}, {f2u(1e-5):#x}, v{H + 8 + tb}")
    for tb in range(8):
        a(f"v_rsq_f32 v{H + 16 + 2 * tb}, v{H + 8 + tb}")
    for tb in range(8):
        a(f"v_mul_f32 v{H + 17 + 2 * tb}, v{H + tb}, v{H + 16 + 2 * tb}")
    k = 0
    for c in range(4):
        for i in range(4):
            t = [232, 236, 240, 244, 248][k % 5]
            k += 1
            for par in range(2):
                tb = 2 * i + par
                ab = vr(H + 16 + 2 * tb, 2)
                for e in range(2):
                    p = Z + (tb * 4 + c) * 4 + 2 * e
                    a(f"v_pk_fma_f32 {vr(p, 2)}, {vr(p, 2)}, {ab}, {ab} op_sel:[0,0,1] op_sel_hi:[1,0,1] neg_lo:[0,0,1] neg_hi:[0,0,1]")
            for par in range(2):
                tb = 2 * i + par
                for e in range(2):
                    p = Z + (tb * 4 + c) * 4 + 2 * e
                    a(f"v_cvt_pk_bf16_f32 v{t + 2 * par + e}, v{p}, v{p + 1}")
            a(f"v_permlane16_swap_b32 v{t}, v{t + 2}\nv_permlane16_swap_b32 v{t + 1}, v{t + 3}")
            off = f" offset:{i * 1024}" if i else ""
            a(f"buffer_store_dwordx4 {vr(t, 4)}, v230, {sr(S_WS, 4)}, s{T} offen{off} {sflags}")
        if c < 3:
            a(f"s_add_u32 s{T}, s{T}, 65536")


def phase1(a, prof, sflags=""):
    T = S_T
    a(f"v_lshrrev_b32 v1, 6, v0\nv_and_b32 v0, 63, v0")
    a(f"v_readfirstlane_b32 s{S_WAVE}, v1")
    a(f"s_and_b32 s{T}, s2, 7\ns_lshr_b32 s{T + 1}, s2, 3")
    a(f"s_and_b32 s{S_RB}, s{T}, 1\ns_lshl_b32 s{S_RB}, s{S_RB}, 2\ns_and_b32 s{T + 2}, s{T + 1}, 3\ns_add_u32 s{S_RB}, s{S_RB}, s{T + 2}")
    a(f"s_lshl_b32 s{S_T0}, s{S_RB}, 8")
    a(f"s_lshr_b32 s{T}, s{T}, 1\ns_lshr_b32 s{T + 1}, s{T + 1}, 2")
    a(f"s_and_b32 s{S_CH}, s{S_WAVE}, 1\ns_lshr_b32 s{S_HALF}, s{S_WAVE}, 1")
    a("s_waitcnt lgkmcnt(0)")
    srd_from(a, S_WS, P_WS, 0x10000000)
    srd_from(a, S_DBG, P_DBG, 256)
    a(f"s_lshl_b32 s{T + 2}, s{T}, 2\ns_add_u32 s{T + 2}, s{T + 2}, s{T + 1}")
    a(f"s_cmp_ge_u32 s{T + 1}, 4\ns_cbranch_scc1 L_p1_notA")
    a(f"s_mov_b32 s{S_PAR}, s{T + 2}")
    prof0 = prof.n
    setup(a, "A", "p1a")
    mainloop(a, "A", "p1a", prof)
    epilogue_A(a, prof, sflags)
    prof.stamp(a)
    prof.stamp(a)
    prof.stamp(a)
    a("s_branch L_p1_done")
    a.label("L_p1_notA")
    a(f"s_cmp_lt_u32 s{T}, 2\ns_cbranch_scc1 L_p1_Z\ns_cmp_eq_u32 s{T + 1}, 7\ns_cbranch_scc0 L_p1_Z")
    a(f"s_sub_u32 s{S_PAR}, s{T}, 2")
    prof.n = prof0
    setup(a, "Y", "p1y")
    mainloop(a, "Y", "p1y", prof)
    epilogue_Y(a, prof, sflags)
    prof.stamp(a)
    prof.stamp(a)
    prof.stamp(a)
    a("s_branch L_p1_done")
    a.label("L_p1_Z")
    a(f"s_max_u32 s{T}, s{T}, 2\ns_sub_u32 s{T}, s{T}, 2\ns_sub_u32 s{S_PAR}, s{T + 2}, 4\ns_sub_u32 s{S_PAR}, s{S_PAR}, s{T}")
    prof.n = prof0
    setup(a, "Z", "p1z")
    mainloop(a, "Z", "p1z", prof)
    a("s_waitcnt vmcnt(0)\ns_barrier")
    epilogue_Z(a, "p1z", prof, sflags)
    prof.stamp(a)
    a.label("L_p1_done")
```

```python
from common import *
from phase1 import (S_WAVE, S_T, S_WS, P_WSP, P_BSP, P_WS, lane16, flat)

STG = 30720
NSTG = 5
S_A, S_B, S_BS = 4, 8, 12
S_TI, S_FJ, S_HALF, S_KH = 25, 26, 50, 51
S_KA, S_KB, S_FILL, S_RD, S_CA, S_CB, S_J, S_D = 28, 29, 32, 33, 34, 35, 36, 37
S_ASZ, S_BSZ = 52, 53
S_TG = 54
ACC = 0
V_AD, V_BD = 112, 116
V_LO, V_HI, V_ZB = 120, 121, 122
V_L = 123
V_H1 = 128
V_BSP = 156
V_T = 160
SET = [0, 64]


def acc(i, c):
    return ACC + (i * 7 + c) * 4


def mfmas(s):
    return [mfma(vr(acc(i, c), 4), ar(s + 16 + 4 * c, 4), ar(s + 4 * i, 4)) for i in range(4) for c in range(7)]


def reads(s):
    ws = [f"ds_read_b128 {ar(s + 4 * i, 4)}, v{V_LO if i < 2 else V_HI} offset:{(i & 1) * 2048}" for i in range(4)]
    zs = [f"ds_read_b64_tr_b16 {ar(s + 16 + 4 * c + 2 * h, 2)}, v{V_ZB} offset:{c * 2048 + h * 256}" for c in range(7) for h in range(2)]
    return [ws[0]] + zs + ws[1:]


def dma():
    o = [f"s_add_u32 m0, s{S_FILL}, s{S_CA}"]
    for q in range(4):
        off = f" offset:{q * 1024}" if q else ""
        o.append(f"buffer_load_dwordx4 v{V_AD + q}, {sr(S_A, 4)}, s{S_KA} offen{off} lds")
    o.append(f"s_add_u32 m0, s{S_FILL}, s{S_CB}")
    for q in range(3):
        off = f" offset:{q * 1024}" if q else ""
        o.append(f"buffer_load_dwordx4 v{V_BD + q}, {sr(S_B, 4)}, s{S_KB} offen{off} lds")
    o.append(["s_mov_b32 exec_hi, 0", f"buffer_load_dwordx4 v{V_BD + 3}, {sr(S_B, 4)}, s{S_KB} offen offset:3072 lds",
              "s_mov_b32 exec_hi, -1"])
    return o


def phase2(a, prof, sflags=""):
    T = S_T
    t0, t1, t2, t3, t4 = V_T, V_T + 1, V_T + 2, V_T + 3, V_T + 4
    L = V_L
    a(f"s_and_b32 s{T}, s2, 7\ns_lshr_b32 s{T + 1}, s2, 3")
    a(f"s_lshr_b32 s{S_TI}, s{T}, 1\ns_lshl_b32 s{S_TI}, s{S_TI}, 2\ns_and_b32 s{T + 2}, s{T + 1}, 3\ns_add_u32 s{S_TI}, s{S_TI}, s{T + 2}")
    a(f"s_and_b32 s{S_FJ}, s{T}, 1\ns_lshl_b32 s{S_FJ}, s{S_FJ}, 3\ns_lshr_b32 s{T + 2}, s{T + 1}, 2\ns_add_u32 s{S_FJ}, s{S_FJ}, s{T + 2}")
    a(f"s_and_b32 s{S_HALF}, s{S_WAVE}, 1\ns_lshr_b32 s{S_KH}, s{S_WAVE}, 1")
    srd_from(a, S_A, P_WSP, 2048 * 4096)
    srd_from(a, S_B, P_WS, SZ_Z2N, WS_Z2N)
    srd_from(a, S_BS, P_BSP, 4096)
    a(f"s_mov_b32 s{S_ASZ}, {2048 * 4096}\ns_mov_b32 s{S_BSZ}, {SZ_Z2N}")
    a(f"v_lshrrev_b32 v{t0}, 3, v{L}\nv_and_b32 v{t1}, 7, v{L}\nv_lshrrev_b32 v{t2}, 1, v{t0}")
    a(f"v_xor_b32 v{t3}, v{t1}, v{t2}\nv_xor_b32 v{t4}, 4, v{t3}\nv_lshlrev_b32 v{t0}, 13, v{t0}")
    a(f"v_lshl_add_u32 v{t3}, v{t3}, 4, v{t0}\nv_lshl_add_u32 v{t4}, v{t4}, 4, v{t0}")
    a(f"s_lshl_b32 s{T}, s{S_TI}, 7\ns_lshl_b32 s{T + 1}, s{S_WAVE}, 5\ns_add_u32 s{T}, s{T}, s{T + 1}\ns_lshl_b32 s{T}, s{T}, 12")
    for i in range(4):
        tok = 16 * (i & 1) + (i >> 1)
        a(f"s_add_u32 s{T + 1}, s{T}, {tok * 4096 - i * 1024}")
        a(f"v_add_u32 v{V_AD + i}, s{T + 1}, v{t4 if i & 1 else t3}")
    a(f"s_mul_i32 s{T}, s{S_WAVE}, 3584\ns_and_b32 s{T + 1}, s{S_FJ}, 1\ns_mul_i32 s{T + 2}, s{S_FJ}, 7")
    a(f"v_lshl_add_u32 v{t0}, v{L}, 4, s{T}")
    for e in range(4):
        a(f"v_add_u32 v{t1}, {e * 1024}, v{t0}" if e else f"v_mov_b32 v{t1}, v{t0}")
        a(f"v_lshrrev_b32 v{t2}, 11, v{t1}\nv_and_b32 v{t1}, 0x7ff, v{t1}\nv_add_u32 v{t2}, s{T + 1}, v{t2}")
        a(f"v_cmp_eq_u32 vcc, 7, v{t2}\nv_cndmask_b32 v{t2}, v{t2}, 0, vcc\nv_add_u32 v{t2}, s{T + 2}, v{t2}")
        a(f"v_lshl_add_u32 v{t1}, v{t2}, 16, v{t1}")
        a(f"v_subrev_u32 v{V_BD + e}, {e * 1024}, v{t1}" if e else f"v_mov_b32 v{V_BD}, v{t1}")
    a(f"s_lshl_b32 s{S_CA}, s{S_WAVE}, 12\ns_add_u32 s{S_CB}, s{T}, 16384")
    a(f"s_mov_b32 s{S_FILL}, 0\ns_mov_b32 s{S_KA}, 0\ns_mov_b32 s{S_KB}, 0")
    for st in range(NSTG):
        a(flat(dma()))
        if st < NSTG - 1:
            a(f"s_add_u32 s{S_FILL}, s{S_FILL}, {STG}")
        a(f"s_add_u32 s{S_KA}, s{S_KA}, 128\ns_add_u32 s{S_KB}, s{S_KB}, 2048")
    a(f"s_mov_b32 s{S_FILL}, 0")
    n, g, r, c = V_T + 5, V_T + 6, V_T + 7, V_T + 8
    a(f"v_and_b32 v{n}, 15, v{L}\nv_lshrrev_b32 v{g}, 4, v{L}\nv_bfe_u32 v{r}, v{L}, 2, 2\nv_and_b32 v{c}, 3, v{L}")
    a(f"s_lshl_b32 s{T}, s{S_KH}, 2\nv_add_u32 v{t0}, s{T}, v{g}\nv_lshrrev_b32 v{t1}, 1, v{n}\nv_xor_b32 v{t0}, v{t0}, v{t1}")
    a(f"v_lshlrev_b32 v{t0}, 4, v{t0}\nv_lshl_add_u32 v{t0}, v{n}, 7, v{t0}")
    a(f"s_lshl_b32 s{T}, s{S_HALF}, 13\ns_lshl_b32 s{T + 1}, s{S_KH}, 12\ns_add_u32 s{T}, s{T}, s{T + 1}")
    a(f"v_add_u32 v{V_LO}, s{T}, v{t0}\nv_xor_b32 v{V_HI}, 0x1000, v{V_LO}")
    a(f"v_lshrrev_b32 v{t0}, 1, v{g}\nv_and_b32 v{t1}, 1, v{g}\nv_lshl_add_u32 v{t1}, v{t1}, 2, v{r}\nv_lshl_add_u32 v{t0}, v{t0}, 4, v{t1}")
    a(f"v_lshlrev_b32 v{t0}, 5, v{t0}\nv_lshl_add_u32 v{t0}, v{c}, 3, v{t0}")
    a(f"s_lshl_b32 s{T}, s{S_KH}, 10\ns_add_u32 s{T}, s{T}, 16384\nv_add_u32 v{V_ZB}, s{T}, v{t0}")
    for i in range(112):
        a(f"v_mov_b32 v{ACC + i}, 0")
    a(f"s_lshl_b32 s{S_TG}, s{S_TI}, 2\ns_lshl_b32 s{T}, s{S_HALF}, 1\ns_add_u32 s{S_TG}, s{S_TG}, s{T}\ns_add_u32 s{S_TG}, s{S_TG}, s{S_KH}")
    a(f"s_mov_b32 s{S_J}, 0\ns_mov_b32 s{S_RD}, {STG}")
    a("s_waitcnt vmcnt(32)\ns_barrier")
    prof.stamp(a)
    a(reads(SET[0]))
    for v in (V_LO, V_HI, V_ZB):
        a(f"v_add_u32 v{v}, {STG}, v{v}")
    a.label("L_p2_loop")
    for u in range(2):
        a("s_waitcnt vmcnt(24) lgkmcnt(0)\ns_barrier")
        m = mfmas(SET[u])
        sl = Slots(len(m), cap=2)
        d = dma()
        lastd = sl.chain(d, 0, 2.4)[-1]
        last = sl.chain(reads(SET[1 - u]), 0, 1)[-1]
        book = [f"s_mov_b32 s{S_FILL}, s{S_RD}", f"s_add_u32 s{T}, s{S_RD}, {STG}", f"s_cmp_eq_u32 s{T}, {NSTG * STG}",
                f"s_cselect_b32 s{T}, 0, s{T}", f"s_sub_u32 s{S_D}, s{T}, s{S_RD}", f"s_mov_b32 s{S_RD}, s{T}"]
        book += [f"v_add_u32 v{v}, s{S_D}, v{v}" for v in (V_LO, V_HI, V_ZB)]
        book += [f"s_add_u32 s{S_KA}, s{S_KA}, 128", f"s_add_u32 s{S_KB}, s{S_KB}, 2048", f"s_add_u32 s{S_J}, s{S_J}, 1",
                 f"s_cmp_lt_u32 s{S_J}, 27", f"s_cselect_b32 s{S_A + 2}, s{S_ASZ}, 0", f"s_cselect_b32 s{S_B + 2}, s{S_BSZ}, 0"]
        if u == 1:
            book.append(f"s_cmp_lt_u32 s{S_J}, 32")
        body = sl.emit(m)
        k = max(lastd, last)
        pos = [i for i, x in enumerate(body) if isinstance(x, str) and x.startswith("v_mfma")][k]
        nxt = [i for i, x in enumerate(body) if x.startswith("v_mfma") and i > pos]
        head = body[:nxt[0]] if nxt else body
        rest = body[nxt[0]:] if nxt else []
        a(head)
        per = -(-len(book) // (len(rest) + 1))
        a(book[:per])
        for i, x in enumerate(rest):
            a(x)
            a(book[(i + 1) * per:(i + 2) * per])
    a("s_cbranch_scc1 L_p2_loop")
    prof.stamp(a)
    a(f"v_lshlrev_b32 v{V_T}, 4, v{L}")
    a(f"s_mul_i32 s{T}, s{S_TG}, 112\ns_mul_i32 s{T + 1}, s{S_FJ}, 7\ns_add_u32 s{T}, s{T}, s{T + 1}\ns_lshl_b32 s{T}, s{T}, 10\ns_add_u32 s{T}, s{T}, {WS_H1:#x}")
    a(f"s_and_b32 s{T + 2}, s{S_FJ}, 1\ns_lshl_b32 s{T + 3}, s{T + 2}, 10\ns_add_u32 s{T + 3}, s{T + 3}, s{T}")
    a(f"s_add_u32 s{T + 4}, s{T + 3}, 4096")
    a(f"s_cmp_eq_u32 s{T + 2}, 0\ns_cselect_b32 s{T + 5}, 6144, 0\ns_add_u32 s{T + 5}, s{T + 5}, s{T}")
    for c in range(6):
        off = f" offset:{(c % 4) * 1024}" if c % 4 else ""
        a(f"buffer_load_dwordx4 {vr(V_H1 + 4 * c, 4)}, v{V_T}, {sr(S_WS, 4)}, s{T + 3 if c < 4 else T + 4} offen{off} {sflags}")
    a(f"buffer_load_dwordx4 {vr(V_H1 + 24, 4)}, v{V_T}, {sr(S_WS, 4)}, s{T + 5} offen {sflags}")
    a(f"v_and_b32 v{V_T + 1}, 15, v{L}\nv_lshlrev_b32 v{V_T + 1}, 2, v{V_T + 1}\ns_lshl_b32 s{T}, s{S_TG}, 6")
    a(f"buffer_load_dword v{V_BSP}, v{V_T + 1}, {sr(S_BS, 4)}, s{T} offen")
    a(f"s_mul_i32 s{T}, s{S_WAVE}, 14336\nv_add_u32 v{V_T + 2}, s{T}, v{V_T}")
    a(f"s_xor_b32 s{T}, s{S_WAVE}, 2\ns_mul_i32 s{T}, s{T}, 14336\nv_add_u32 v{V_T + 3}, s{T}, v{V_T}")
    a("s_waitcnt vmcnt(8) lgkmcnt(0)\ns_barrier")
    for k in range(14):
        a(f"ds_write_b128 v{V_T + 2}, {vr(acc(2, 0) + 4 * k, 4)} offset:{k * 1024}")
    a("s_waitcnt lgkmcnt(0)\ns_barrier")
    for k in range(14):
        a(f"ds_read_b128 {vr(acc(2, 0) + 4 * k, 4)}, v{V_T + 3} offset:{k * 1024}")
    prof.stamp(a)
    VK = V_T + 4
    a(f"v_mov_b32 v{VK}, {f2u(GELU_C1):#x}\nv_mov_b32 v{VK + 1}, {f2u(GELU_C0):#x}")
    BS = V_T + 6
    a("s_waitcnt vmcnt(0)")
    a(f"v_lshlrev_b32 v{BS}, 16, v{V_BSP}\nv_and_b32 v{BS + 2}, 0xffff0000, v{V_BSP}")
    GZ = 176
    tmps = [232 + 2 * i for i in range(8)]
    for c in range(7):
        for e in range(4):
            a(f"v_lshlrev_b32 v{GZ + 8 * c + 2 * e}, 16, v{V_H1 + 4 * c + e}")
            a(f"v_and_b32 v{GZ + 8 * c + 2 * e + 1}, 0xffff0000, v{V_H1 + 4 * c + e}")
    pairs = [GZ + 2 * i for i in range(28)]
    for s in range(0, 28, 7):
        a(gelu_pairs(pairs[s:s + 7], tmps, VK))
    a("s_waitcnt lgkmcnt(0)")
    for k in range(28):
        a(f"v_pk_add_f32 {vr(ACC + 2 * k, 2)}, {vr(ACC + 2 * k, 2)}, {vr(acc(2, 0) + 2 * k, 2)}")
    for par in range(2):
        for c in range(7):
            for e in range(2):
                p = acc(par, c) + 2 * e
                a(f"v_pk_add_f32 {vr(p, 2)}, {vr(p, 2)}, {vr(BS + 2 * par, 2)} op_sel_hi:[1,0]")
                a(f"v_pk_mul_f32 {vr(p, 2)}, {vr(p, 2)}, {vr(GZ + 8 * c + 4 * par + 2 * e, 2)}")
    a(f"s_mul_i32 s{T}, s{S_TG}, 88\ns_add_u32 s{T}, s{T}, 32\ns_mul_i32 s{T + 1}, s{S_FJ}, 7\ns_and_b32 s{T + 2}, s{S_FJ}, 1")
    a(f"s_add_u32 s{T + 3}, s{T + 1}, s{T + 2}\ns_lshr_b32 s{T + 3}, s{T + 3}, 1\ns_add_u32 s{T + 3}, s{T + 3}, s{T}\ns_lshl_b32 s{T + 3}, s{T + 3}, 11")
    a(f"s_cmp_eq_u32 s{T + 2}, 0\ns_cselect_b32 s{T + 4}, 6, 0\ns_add_u32 s{T + 4}, s{T + 4}, s{T + 1}\ns_lshr_b32 s{T + 4}, s{T + 4}, 1")
    a(f"s_add_u32 s{T + 4}, s{T + 4}, s{T}\ns_lshl_b32 s{T + 4}, s{T + 4}, 11\ns_lshl_b32 s{T + 2}, s{T + 2}, 3\ns_add_u32 s{T + 4}, s{T + 4}, s{T + 2}")
    if WS_ACT:
        a(f"s_add_u32 s{T + 3}, s{T + 3}, {WS_ACT:#x}\ns_add_u32 s{T + 4}, s{T + 4}, {WS_ACT:#x}")
    k = 0
    for pp in range(3):
        for par in range(2):
            t = 232 + 4 * (k % 4)
            k += 1
            for cc in range(2):
                for e in range(2):
                    p = acc(par, 2 * pp + cc) + 2 * e
                    a(f"v_cvt_pk_bf16_f32 v{t + 2 * cc + e}, v{p}, v{p + 1}")
            o = (pp & 1) * 2048 + par * 1024
            off = f" offset:{o}" if o else ""
            a(f"buffer_store_dwordx4 {vr(t, 4)}, v{V_T}, {sr(S_WS, 4)}, s{T + 3} offen{off} {sflags}")
        if pp == 1:
            a(f"s_add_u32 s{T + 3}, s{T + 3}, 4096")
    for par in range(2):
        t = 248 + 2 * par
        for e in range(2):
            p = acc(par, 6) + 2 * e
            a(f"v_cvt_pk_bf16_f32 v{t + e}, v{p}, v{p + 1}")
        off = f" offset:{par * 1024}" if par else ""
        a(f"buffer_store_dwordx2 {vr(t, 2)}, v{V_T}, {sr(S_WS, 4)}, s{T + 4} offen{off} {sflags}")
    prof.stamp(a)
```

```python
from common import *
from phase1 import (S_WAVE, S_T, S_WS, P_WO, P_WOUT, P_OUT, P_WS, flat)

S_W, S_ACT, S_OUT = 4, 8, 12
S_TI, S_DJ = 25, 26
S_KW, S_KA, S_IT, S_MW = 28, 29, 36, 32
S_TG = 54
ACC_A, ACC_B = 0, 32
V_RING = 64
V_WD, V_AD, V_RA = 128, 130, 132
V_G = 136
V_L = 123 + 16
V_T = 144
SET = [0, 32]


def mfmas(accb, s, u, kk):
    return [mfma(vr(accb + (par * 4 + c) * 4, 4), ar(s + (kk * 4 + c) * 4, 4), vr(V_RING + u * 16 + (kk * 2 + par) * 4, 4))
            for c in range(4) for par in range(2)]


def reads(s, slot):
    return [f"ds_read_b64_tr_b16 {ar(s + (kk * 4 + c) * 4 + 2 * h, 2)}, v{V_RA + c} offset:{slot * 8192 + kk * 4096 + h * 2048}"
            for kk in range(2) for c in range(4) for h in range(2)]


def dma_w(slot):
    return [f"s_add_u32 m0, s{S_MW}, {slot * 8192}",
            f"buffer_load_dwordx4 v{V_WD}, {sr(S_W, 4)}, s{S_KW} offen lds",
            f"buffer_load_dwordx4 v{V_WD + 1}, {sr(S_W, 4)}, s{S_KW} offen offset:1024 lds"]


def act_loads(u, kk, lflags):
    o = []
    for par in range(2):
        ofs = kk * 2048 + par * 1024
        off = f" offset:{ofs}" if ofs else ""
        o.append(f"buffer_load_dwordx4 {vr(V_RING + u * 16 + (kk * 2 + par) * 4, 4)}, v{V_AD}, {sr(S_ACT, 4)}, s{S_KA} offen{off} {lflags}")
    return o


def step(a, accb, u, lflags):
    a("s_waitcnt vmcnt(16) lgkmcnt(0)\ns_barrier")
    s = SET[u & 1]
    m = mfmas(accb, s, u, 0) + mfmas(accb, s, u, 1)
    sl = Slots(16, cap=2)
    sl.chain(dma_w(u), 0, 1)
    sl.chain(reads(SET[1 - (u & 1)], (u + 1) & 3), 0, 0.75)
    sl.chain([f"s_add_u32 s{S_KW}, s{S_KW}, {64 * 2048}"], 4)
    sl.chain(act_loads(u, 0, lflags), 8, 2)
    a(sl.emit(m))
    a(act_loads(u, 1, lflags))
    a(f"s_add_u32 s{S_KA}, s{S_KA}, 4096")


def phase3(a, prof, lflags=""):
    T = S_T
    L = V_L
    t0, t1, t2, t3, t4 = V_T, V_T + 1, V_T + 2, V_T + 3, V_T + 4
    a(f"s_and_b32 s{T}, s2, 7\ns_lshr_b32 s{T + 1}, s2, 3")
    a(f"s_lshr_b32 s{S_TI}, s{T}, 1\ns_lshl_b32 s{S_TI}, s{S_TI}, 2\ns_and_b32 s{T + 2}, s{T + 1}, 3\ns_add_u32 s{S_TI}, s{S_TI}, s{T + 2}")
    a(f"s_and_b32 s{S_DJ}, s{T}, 1\ns_lshl_b32 s{S_DJ}, s{S_DJ}, 3\ns_lshr_b32 s{T + 2}, s{T + 1}, 2\ns_add_u32 s{S_DJ}, s{S_DJ}, s{T + 2}")
    a(f"s_lshl_b32 s{S_TG}, s{S_TI}, 2\ns_add_u32 s{S_TG}, s{S_TG}, s{S_WAVE}")
    srd_from(a, S_W, P_WO, 1024 * 2048)
    srd_from(a, S_ACT, P_WS, SZ_ACT, WS_ACT)
    srd_from(a, S_OUT, P_OUT, 2048 * 2048)
    a(f"v_lshrrev_b32 v{t0}, 3, v{L}\nv_and_b32 v{t1}, 7, v{L}\nv_and_b32 v{t2}, 6, v{t0}\nv_xor_b32 v{t1}, v{t1}, v{t2}")
    a(f"v_lshlrev_b32 v{t1}, 4, v{t1}\nv_lshl_add_u32 v{t1}, v{t0}, 11, v{t1}")
    a(f"s_lshl_b32 s{T}, s{S_WAVE}, 15\ns_lshl_b32 s{T + 1}, s{S_DJ}, 7\ns_add_u32 s{T}, s{T}, s{T + 1}")
    a(f"v_add_u32 v{V_WD}, s{T}, v{t1}\nv_add_u32 v{V_WD + 1}, {8 * 2048 - 1024}, v{V_WD}")
    a(f"s_mul_i32 s{T}, s{S_TG}, {88 * 2048}\nv_lshl_add_u32 v{V_AD}, v{L}, 4, s{T}")
    a(f"s_lshl_b32 s{S_MW}, s{S_WAVE}, 11\ns_mov_b32 s{S_KW}, 0\ns_mov_b32 s{S_KA}, 0")
    for u in range(4):
        a(dma_w(u))
        a(act_loads(u, 0, lflags) + act_loads(u, 1, lflags))
        a(f"s_add_u32 s{S_KW}, s{S_KW}, {64 * 2048}\ns_add_u32 s{S_KA}, s{S_KA}, 4096")
    n, g, r, c = V_T + 5, V_T + 6, V_T + 7, V_T + 8
    a(f"v_and_b32 v{n}, 15, v{L}\nv_lshrrev_b32 v{g}, 4, v{L}\nv_bfe_u32 v{r}, v{L}, 2, 2\nv_and_b32 v{c}, 3, v{L}")
    a(f"v_lshl_add_u32 v{t0}, v{g}, 2, v{r}\nv_bfe_u32 v{t1}, v{t0}, 1, 2\nv_lshlrev_b32 v{t0}, 7, v{t0}\nv_lshl_add_u32 v{t0}, v{c}, 3, v{t0}")
    for cb in range(4):
        a(f"v_xor_b32 v{t2}, {cb}, v{t1}\nv_lshl_add_u32 v{V_RA + cb}, v{t2}, 5, v{t0}")
    for i in range(64):
        a(f"v_mov_b32 v{i}, 0")
    a("s_waitcnt vmcnt(22)\ns_barrier")
    prof.stamp(a)
    a(reads(SET[0], 0))
    for part, (accb, iters) in enumerate(((ACC_A, 4), (ACC_B, 7))):
        a(f"s_mov_b32 s{S_IT}, 0")
        a.label(f"L_p3_loop{part}")
        a(f"s_cmp_eq_u32 s{S_IT}, {iters - 1}\ns_cbranch_scc0 L_p3_go{part}")
        if part == 0:
            srd_from(a, S_W, P_WOUT, 1792 * 2048)
            a(f"s_mov_b32 s{S_KW}, 0")
        else:
            a(f"s_mov_b32 s{S_W + 2}, 0\ns_mov_b32 s{S_ACT + 2}, 0")
            a(f"v_lshlrev_b32 v{t0}, 3, v{n}\ns_lshl_b32 s{T}, s{S_TG}, 7\ns_add_u32 s{T}, s{T}, {WS_GATE:#x}")
            a(f"buffer_load_dwordx2 {vr(V_G, 2)}, v{t0}, {sr(S_WS, 4)}, s{T} offen {lflags}")
        a.label(f"L_p3_go{part}")
        for u in range(4):
            step(a, accb, u, lflags)
        a(f"s_add_u32 s{S_IT}, s{S_IT}, 1\ns_cmp_lt_u32 s{S_IT}, {iters}\ns_cbranch_scc1 L_p3_loop{part}")
    prof.stamp(a)
    a(f"v_lshlrev_b32 v{t0}, 12, v{n}\nv_and_b32 v{t1}, 1, v{g}\nv_lshl_add_u32 v{t0}, v{t1}, 5, v{t0}")
    a(f"v_lshrrev_b32 v{t1}, 1, v{g}\nv_lshl_add_u32 v{t0}, v{t1}, 4, v{t0}")
    a(f"s_lshl_b32 s{T}, s{S_TG}, 16\ns_lshl_b32 s{T + 1}, s{S_DJ}, 7\ns_add_u32 s{T}, s{T}, s{T + 1}")
    a("s_waitcnt vmcnt(0) lgkmcnt(0)")
    for k in range(16):
        a(f"v_pk_add_f32 {vr(ACC_A + 2 * k, 2)}, {vr(ACC_A + 2 * k, 2)}, {vr(ACC_B + 2 * k, 2)} neg_lo:[0,1] neg_hi:[0,1]")
    for k in range(16):
        par = k >> 3
        a(f"v_pk_fma_f32 {vr(ACC_A + 2 * k, 2)}, {vr(ACC_A + 2 * k, 2)}, {vr(V_G, 2)}, {vr(ACC_B + 2 * k, 2)} "
          f"op_sel:[0,{par},0] op_sel_hi:[1,{par},1]")
    for par in range(2):
        for pr in range(2):
            t = V_RING + (par * 2 + pr) * 4
            for cc in range(2):
                for e in range(2):
                    p = ACC_A + (par * 4 + pr * 2 + cc) * 4 + 2 * e
                    a(f"v_cvt_pk_bf16_f32 v{t + 2 * cc + e}, v{p}, v{p + 1}")
            a(f"v_permlane16_swap_b32 v{t}, v{t + 2}\nv_permlane16_swap_b32 v{t + 1}, v{t + 3}")
            o = par * 2048 + pr * 64
            off = f" offset:{o}" if o else ""
            a(f"buffer_store_dwordx4 {vr(t, 4)}, v{t0}, {sr(S_OUT, 4)}, s{T} offen{off}")
    prof.stamp(a)
```

```python
import sys, os
sys.path.insert(0, os.path.dirname(os.path.abspath(__file__)))
from common import *
import phase1, phase2, phase3

HEADER = """; gated_mix: x -> [local dilated attention | gMLP spatial gating] -> gated mix.  Generated by gen/gen.py.
"""


def build(prof=False, only=None):
    a = Asm()
    names = ["gm_p1_kernel", "gm_p2_kernel", "gm_p3_kernel"]
    use = [i for i in range(3) if only is None or i in only]
    for i in use:
        a.raw(f"; @launch kernel={names[i]} grid=(256,1,1) block=(256,1,1) lds=163840")
    a.raw('.amdgcn_target "amdgcn-amd-amdhsa--gfx950"')
    for i in use:
        kernel_head(a, names[i])
        p = Prof(prof, 80, i)
        a(f"s_cmp_ge_u32 s2, 256\ns_cbranch_scc1 L_end{i}")
        p.stamp(a)
        phase1.load_kernargs(a)
        if i == 0:
            phase1.phase1(a, p)
        else:
            L = phase2.V_L if i == 1 else phase3.V_L
            a(f"v_lshrrev_b32 v1, 6, v0\nv_and_b32 v{L}, 63, v0\nv_readfirstlane_b32 s{phase1.S_WAVE}, v1\ns_waitcnt lgkmcnt(0)")
            srd_from(a, phase1.S_WS, phase1.P_WS, 0x10000000)
            (phase2.phase2 if i == 1 else phase3.phase3)(a, p)
        if prof:
            a("s_waitcnt vmcnt(0)")
            p.stamp(a)
            p.flush(a, phase1.S_WS, "s2", f"s{phase1.S_WAVE}", 250)
        a.label(f"L_end{i}")
        a("s_endpgm")
    txt = a.finish()
    for i in use:
        txt += kernel_desc(names[i])
    return HEADER + txt, a


if __name__ == "__main__":
    out = sys.argv[1] if len(sys.argv) > 1 else "cdna_kernels/" + NAME + ".s"
    prof = "--prof" in sys.argv
    txt, a = build(prof)
    open(out, "w").write(txt)
    print("wrote", out, len(txt), "bytes; nops inserted:", a.n_nops)
```

```python
from asmlib import *

NAME = "gated_mix__sliding_local_dilated__mixer_gmlp__prompt"

KA_X, KA_WQKV, KA_WO, KA_BX, KA_WIN, KA_WSP, KA_BSP, KA_WOUT, KA_GATE, KA_OUT, KA_DBG, KA_WS = [8 * i for i in range(12)]

WS_ACT = 0x0000000
WS_H1 = 0x0C00000
WS_Z2N = 0x1400000
WS_GATE = 0x1C00000
WS_STATS = 0x1C10000
WS_FLAG = 0x1C60000
WS_PROF = 0x1D00000
SZ_ACT = 64 * 88 * 2048
SZ_H1 = 64 * 112 * 1024
SZ_Z2N = 112 * 65536
SZ_GATE = 2048 * 4
SZ_STATS = 16 * 16 * 1024
FL_F, FL_H, FL_G = WS_FLAG, WS_FLAG + 1024, WS_FLAG + 2048

SRD3 = "0x20000"


def srd_from(a, dst, ptr, size, off=0):
    if off:
        a(f"s_add_u32 s{dst}, s{ptr}, {off:#x}")
        a(f"s_addc_u32 s{dst + 1}, s{ptr + 1}, 0")
    else:
        a(f"s_mov_b32 s{dst}, s{ptr}")
        a(f"s_mov_b32 s{dst + 1}, s{ptr + 1}")
    if isinstance(size, str):
        a(f"s_mov_b32 s{dst + 2}, {size}")
    else:
        a(f"s_mov_b32 s{dst + 2}, {size:#x}")
    a(f"s_mov_b32 s{dst + 3}, {SRD3}")


def kernel_head(a, name):
    a.raw(".text")
    a.raw(f".globl {name}")
    a.raw(".p2align 8")
    a.raw(f".type {name},@function")
    a.raw(f"{name}:")


def kernel_desc(name, nfv=512, acc=256):
    return f""".section .rodata,"a"
.p2align 6
.amdhsa_kernel {name}
  .amdhsa_next_free_vgpr {nfv}
  .amdhsa_next_free_sgpr 102
  .amdhsa_accum_offset {acc}
  .amdhsa_group_segment_fixed_size 0
  .amdhsa_kernarg_size 96
  .amdhsa_user_sgpr_count 2
  .amdhsa_user_sgpr_kernarg_segment_ptr 1
  .amdhsa_system_sgpr_workgroup_id_x 1
  .amdhsa_float_denorm_mode_32 3
.end_amdhsa_kernel
"""


class Slots:
    def __init__(self, n, cap=1):
        self.n = n
        self.cap = cap
        self.gaps = [[] for _ in range(n)]

    def put(self, item, want):
        p = max(0, min(want, self.n - 1))
        cap = self.cap
        while True:
            for q in range(p, self.n):
                if len(self.gaps[q]) < cap:
                    self.gaps[q].append(item)
                    return q
            cap += 1

    def chain(self, items, start, stride=1, strict=True):
        last = -1
        pos = float(start)
        out = []
        for it in items:
            want = max(int(pos), last + (1 if strict else 0))
            if want >= self.n:
                self.gaps[self.n - 1].append(it)
                last = self.n - 1
            else:
                last = self.put(it, want)
            out.append(last)
            pos += stride
        return out

    def emit(self, main):
        out = []
        for m, g in zip(main, self.gaps):
            out.append(m)
            for f in g:
                if isinstance(f, (list, tuple)):
                    out.extend(f)
                else:
                    out.append(f)
        return out


GELU_C0 = -2.0 * 0.7978845608028654 * 1.4426950408889634
GELU_C1 = GELU_C0 * 0.044715


def gelu_pairs(xs, ts, vk):
    o = []
    for x, t in zip(xs, ts):
        o.append(f"v_pk_mul_f32 {vr(t, 2)}, {vr(x, 2)}, {vr(x, 2)}")
    for x, t in zip(xs, ts):
        o.append(f"v_pk_fma_f32 {vr(t, 2)}, {vr(t, 2)}, {vr(vk, 2)}, {vr(vk, 2)} op_sel:[0,0,1] op_sel_hi:[1,0,1]")
    for x, t in zip(xs, ts):
        o.append(f"v_pk_mul_f32 {vr(t, 2)}, {vr(t, 2)}, {vr(x, 2)}")
    for x, t in zip(xs, ts):
        o.append(f"v_exp_f32 v{t}, v{t}")
        o.append(f"v_exp_f32 v{t + 1}, v{t + 1}")
    for x, t in zip(xs, ts):
        o.append(f"v_pk_add_f32 {vr(t, 2)}, {vr(t, 2)}, 1.0 op_sel_hi:[1,0]")
    for x, t in zip(xs, ts):
        o.append(f"v_rcp_f32 v{t}, v{t}")
        o.append(f"v_rcp_f32 v{t + 1}, v{t + 1}")
    for x, t in zip(xs, ts):
        o.append(f"v_pk_mul_f32 {vr(x, 2)}, {vr(x, 2)}, {vr(t, 2)}")
    return o


def mfma(d, a_, b_, c=None):
    c = d if c is None else c
    return f"v_mfma_f32_16x16x32_bf16 {d}, {a_}, {b_}, {c}"


class Prof:
    VR, VC = 254, 255

    def __init__(self, on):
        self.on = on
        self.n = 0

    def stamp(self, a, idx=None):
        if idx is not None:
            self.n = idx
        if self.on:
            a("s_memrealtime s[92:93]\ns_memtime s[94:95]\ns_waitcnt lgkmcnt(0)")
            a(f"v_writelane_b32 v{self.VR}, s92, {self.n}\nv_writelane_b32 v{self.VC}, s94, {self.n}")
        self.n += 1

    def init(self, a):
        if self.on:
            a(f"v_mov_b32 v{self.VR}, 0\nv_mov_b32 v{self.VC}, 0")

    def flush(self, a, ws_srd, s_wg, s_wave):
        if not self.on:
            return
        a(f"s_lshl_b32 s92, {s_wg}, 2\ns_add_u32 s92, s92, {s_wave}\ns_lshl_b32 s92, s92, 8\ns_add_u32 s92, s92, {WS_PROF:#x}")
        a("v_mbcnt_lo_u32_b32 v0, -1, 0\nv_mbcnt_hi_u32_b32 v0, -1, v0\nv_lshlrev_b32 v0, 2, v0")
        a(f"s_mov_b32 exec_hi, 0\nbuffer_store_dword v{self.VR}, v0, {sr(ws_srd, 4)}, s92 offen")
        a(f"buffer_store_dword v{self.VC}, v0, {sr(ws_srd, 4)}, s92 offen offset:128\ns_mov_b32 exec_hi, -1")


SPIN_MAX = "0x40000"


def spin(a, label, load, vdat, cond, s_cnt, s_tmp):
    a(f"s_mov_b32 {s_cnt}, 0")
    a.label(label)
    a(load)
    a("s_waitcnt vmcnt(0)")
    check(a, vdat, cond, s_tmp)
    a(f"s_cbranch_scc1 {label}_out")
    a(f"s_add_u32 {s_cnt}, {s_cnt}, 1\ns_cmp_lt_u32 {s_cnt}, {SPIN_MAX}\ns_cbranch_scc1 {label}")
    a.label(label + "_out")


def check(a, vdat, cond, s_tmp):
    if cond[0] == "all_nonzero":
        a(f"v_cmp_eq_u32 vcc, 0, v{vdat}\ns_cmp_eq_u64 vcc, 0")
    elif cond[0] == "ge":
        a(f"v_readfirstlane_b32 {s_tmp}, v{vdat}\ns_cmp_ge_u32 {s_tmp}, {cond[1]}")
    else:
        a(cond[1])
        a(f"v_cmp_eq_u32 vcc, -1, v{vdat}\ns_cmp_eq_u64 vcc, 0")
```

```python
from common import *

XS = 34816
WS0 = 3 * XS
WSZ = 28672
GATE_LDS = WS0 + 2 * WSZ

S_X, S_W, S_E, S_WS, S_DBG = 4, 8, 12, 16, 20
S_WAVE, S_RB, S_PAR, S_T0 = 24, 25, 26, 27
S_KX, S_KW, S_KE, S_FOFF = 28, 29, 30, 31
S_XF, S_WF, S_EOFF, S_HOFF = 32, 33, 34, 35
S_J, S_D0, S_D1, S_D2, S_DW = 36, 37, 38, 39, 40
S_T = 41
S_HALF, S_CH = 50, 51
S_PTR = 56
P_X, P_WQKV, P_WO, P_BX, P_WIN, P_WSP, P_BSP, P_WOUT, P_GATE, P_OUT = [S_PTR + 2 * i for i in range(10)]
P_DBG, P_WS = 76, 78
S_PF0, S_PF1, S_PF2 = 80, 84, 88
S_CNT, S_TMP = 96, 97
V_C0 = 251
SF = "sc1"

ACC = 16
V_XD, V_HD, V_WD, V_ED = 224, 232, 233, 239
V_XA0, V_XA1, V_HA0, V_HA1, V_WA, V_EA = 240, 241, 242, 243, 244, 250
SET = [0, 64]
F_X, F_H, F_W, F_E = 0, 32, 36, 60
A_EX = 128


def load_kernargs(a):
    a(f"s_load_dwordx16 s[{S_PTR}:{S_PTR + 15}], s[0:1], 0")
    a(f"s_load_dwordx4 s[{S_PTR + 16}:{S_PTR + 19}], s[0:1], 64")
    a(f"s_load_dwordx4 s[{P_DBG}:{P_DBG + 3}], s[0:1], 80")


def mfma_list(typ, s, zero=False):
    def mfma(d, x, y):
        return f"v_mfma_f32_16x16x32_bf16 {d}, {x}, {y}, {'0' if zero else d}"
    fx = lambda tb: ar(s + F_X + 4 * tb, 4)
    fh = ar(s + F_H, 4)
    fw = lambda b: ar(s + F_W + 4 * b, 4)
    fe = ar(s + F_E, 4)
    o = []
    for tb in range(8):
        if typ == "A":
            for c in range(2):
                o.append(mfma(vr(ACC + (tb * 2 + c) * 4, 4), fw(c), fx(tb)))
            for c in range(2):
                o.append(mfma(vr(ACC + 64 + (tb * 2 + c) * 4, 4), fw(2 + c), fx(tb)))
            for c in range(2):
                o.append(mfma(vr(ACC + 136 + (tb * 2 + c) * 4, 4), fx(tb), fw(4 + c)))
            o.append(mfma(ar(A_EX + tb * 4, 4), fe, fx(tb)))
        elif typ == "Z":
            for c in range(4):
                o.append(mfma(vr(ACC + (tb * 4 + c) * 4, 4), fw(c), fx(tb)))
            for c in range(2):
                o.append(mfma(vr(ACC + 128 + (tb * 2 + c) * 4, 4), fw(4 + c), fx(tb)))
        else:
            for c in range(6):
                o.append(mfma(vr(ACC + (tb * 6 + c) * 4, 4), fw(c), fx(tb)))
            o.append(mfma(ar(A_EX + tb * 4, 4), fe, fx(tb)))
    if typ == "A":
        for c in range(2):
            o.append(mfma(vr(ACC + 64 + (16 + c) * 4, 4), fw(2 + c), fh))
        for c in range(2):
            o.append(mfma(vr(ACC + 136 + (16 + c) * 4, 4), fh, fw(4 + c)))
    return o


def frag_reads(typ, kk):
    s = SET[kk]
    xa = V_XA1 if kk else V_XA0
    ha = V_HA1 if kk else V_HA0
    xs = [f"ds_read_b128 {ar(s + F_X + 4 * tb, 4)}, v{xa} offset:{tb * 2048}" for tb in range(8)]
    ws = []
    for b in range(6):
        for h in range(2):
            ws.append(f"ds_read_b64_tr_b16 {ar(s + F_W + 4 * b + 2 * h, 2)}, v{V_WA + b} offset:{kk * 4096 + h * 512}")
    if typ == "A":
        for h in range(2):
            ws.append(f"ds_read_b64_tr_b16 {ar(s + F_E + 2 * h, 2)}, v{V_EA} offset:{kk * 2048 + h * 256}")
        xs.append(f"ds_read_b128 {ar(s + F_H, 4)}, v{ha}")
    elif typ == "Y":
        ws.append(f"ds_read_b128 {ar(s + F_E, 4)}, v{V_EA} offset:{kk * 64}")
    return [xs[0]] + ws + xs[1:]


def dma_x(typ):
    o = []
    for grp in range(2):
        o.append(f"s_add_u32 m0, s{S_XF}, {grp * 4096}" if grp else f"s_mov_b32 m0, s{S_XF}")
        for q in range(4):
            off = f" offset:{q * 1024}" if q else ""
            o.append(f"buffer_load_dwordx4 v{V_XD + grp * 4 + q}, {sr(S_X, 4)}, s{S_KX} offen{off} lds")
    if typ == "A":
        o.append(f"s_add_u32 m0, s{S_XF}, s{S_HOFF}")
        o.append(["s_mov_b32 exec_hi, 0",
                  f"buffer_load_dwordx4 v{V_HD}, {sr(S_X, 4)}, s{S_KX} offen lds",
                  "s_mov_b32 exec_hi, -1"])
    return o


def dma_w(typ):
    o = [f"s_mov_b32 m0, s{S_WF}"]
    for q in range(4):
        off = f" offset:{q * 1024}" if q else ""
        o.append(f"buffer_load_dwordx4 v{V_WD + q}, {sr(S_W, 4)}, s{S_KW} offen{off} lds")
    o.append(f"s_add_u32 m0, s{S_WF}, 4096")
    for q in range(2):
        off = f" offset:{q * 1024}" if q else ""
        o.append(f"buffer_load_dwordx4 v{V_WD + 4 + q}, {sr(S_W, 4)}, s{S_KW} offen{off} lds")
    if typ == "A":
        o.append(f"s_add_u32 m0, s{S_WF}, s{S_EOFF}")
        o.append(f"buffer_load_dwordx4 v{V_ED}, {sr(S_E, 4)}, s{S_KE} offen lds")
    return o


def flat(items):
    o = []
    for it in items:
        if isinstance(it, (list, tuple)):
            o.extend(it)
        else:
            o.append(it)
    return o


def setup(a, typ, tag):
    T = S_T
    t0, t1, t2, t3, t4, t5 = 200, 201, 202, 203, 204, 205
    stride = 6144 if typ == "A" else 7168
    a(f"v_lshrrev_b32 v{t0}, 3, v0")
    a(f"v_and_b32 v{t1}, 7, v0")
    a(f"v_lshrrev_b32 v{t2}, 1, v{t0}")
    a(f"v_xor_b32 v{t3}, v{t1}, v{t2}")
    a(f"v_xor_b32 v{t4}, 4, v{t3}")
    a(f"v_lshlrev_b32 v{t0}, 12, v{t0}")
    a(f"v_lshl_add_u32 v{t3}, v{t3}, 4, v{t0}")
    a(f"v_lshl_add_u32 v{t4}, v{t4}, 4, v{t0}")
    a(f"s_lshl_b32 s{T}, s{S_WAVE}, 6\ns_add_u32 s{T}, s{T}, s{S_T0}\ns_lshl_b32 s{T}, s{T}, 11")
    for i in range(8):
        tok = 32 * (i >> 2) + 16 * (i & 1) + ((i >> 1) & 1)
        a(f"s_add_u32 s{T + 1}, s{T}, {tok * 2048 - (i & 3) * 1024}")
        a(f"v_add_u32 v{V_XD + i}, s{T + 1}, v{t4 if i & 1 else t3}")
    srd_from(a, S_X, P_X, 2048 * 2048)
    if typ == "A":
        a(f"v_lshrrev_b32 v{t0}, 3, v0\nv_and_b32 v{t0}, 3, v{t0}")
        a(f"s_lshl_b32 s{T}, s{S_WAVE}, 2")
        a(f"v_add_u32 v{t0}, s{T}, v{t0}")
        a(f"v_and_b32 v{t2}, 7, v{t0}\nv_lshlrev_b32 v{t2}, 1, v{t2}")
        a(f"v_lshrrev_b32 v{t3}, 3, v{t0}\nv_add_u32 v{t2}, v{t2}, v{t3}")
        a(f"s_sub_u32 s{T}, s{S_T0}, 16\nv_add_u32 v{t2}, s{T}, v{t2}\nv_max_i32 v{t2}, 0, v{t2}")
        a(f"v_lshrrev_b32 v{t0}, 1, v{t0}\nv_xor_b32 v{t0}, v{t1}, v{t0}\nv_lshlrev_b32 v{t0}, 4, v{t0}")
        a(f"v_lshl_add_u32 v{V_HD}, v{t2}, 11, v{t0}")
        a(f"s_mul_i32 s{T}, s{S_WAVE}, {8192 - 512}\ns_sub_u32 s{S_HOFF}, 32768, s{T}")
    a(f"s_lshl_b32 s{S_XF}, s{S_WAVE}, 13\ns_mov_b32 s{S_KX}, 0")
    a(flat(dma_x(typ)))
    if typ == "A":
        a(f"s_lshl_b32 s{T}, s{S_PAR}, 7\ns_movk_i32 s{T + 1}, 2048\ns_add_u32 s{T + 2}, s{T}, 4096")
        srd_from(a, S_W, P_WQKV, 1024 * 6144)
    elif typ == "Z":
        a(f"s_lshl_b32 s{T}, s{S_PAR}, 8\ns_add_u32 s{T}, s{T}, 3584\ns_movk_i32 s{T + 1}, 128")
        a(f"s_lshl_b32 s{T + 2}, s{S_PAR}, 7\ns_add_u32 s{T + 2}, s{T + 2}, 1024")
        srd_from(a, S_W, P_WIN, 1024 * 7168)
    else:
        a(f"s_mul_i32 s{T}, s{S_PAR}, 384\ns_add_u32 s{T}, s{T}, 2816\ns_movk_i32 s{T + 1}, 128\ns_add_u32 s{T + 2}, s{T}, 256")
        srd_from(a, S_W, P_WIN, 1024 * 7168)
    a(f"v_lshrrev_b32 v{t0}, 3, v0\nv_and_b32 v{t1}, 7, v0\nv_and_b32 v{t2}, 2, v{t0}\nv_xor_b32 v{t1}, v{t1}, v{t2}")
    a(f"v_mul_u32_u24 v{t0}, {stride}, v{t0}\nv_lshl_add_u32 v{t3}, v{t1}, 4, v{t0}\nv_xor_b32 v{t4}, 64, v{t3}")
    a(f"s_mul_i32 s{T + 3}, s{S_WAVE}, 6")
    for i in range(6):
        imm = (i if i < 4 else i - 4) * 1024
        a(f"s_add_u32 s{T + 4}, s{T + 3}, {i}\ns_lshr_b32 s{T + 5}, s{T + 4}, 3\ns_and_b32 s{T + 4}, s{T + 4}, 7")
        a(f"s_mul_i32 s{T + 6}, s{T + 5}, s{T + 1}\ns_add_u32 s{T + 6}, s{T + 6}, s{T}\ns_cmp_eq_u32 s{T + 5}, 2\ns_cselect_b32 s{T + 6}, s{T + 2}, s{T + 6}")
        a(f"s_mul_i32 s{T + 4}, s{T + 4}, {8 * stride}\ns_add_u32 s{T + 6}, s{T + 6}, s{T + 4}")
        if imm:
            a(f"s_sub_u32 s{T + 6}, s{T + 6}, {imm}")
        a(f"v_add_u32 v{V_WD + i}, s{T + 6}, v{t4 if i & 1 else t3}")
    if typ == "A":
        srd_from(a, S_E, P_WIN, 1024 * 7168)
        a(f"v_lshrrev_b32 v{t0}, 2, v0\ns_lshl_b32 s{T}, s{S_WAVE}, 4\nv_add_u32 v{t0}, s{T}, v{t0}")
        a(f"v_and_b32 v{t1}, 3, v0\nv_lshrrev_b32 v{t2}, 2, v{t0}\nv_and_b32 v{t2}, 2, v{t2}\nv_xor_b32 v{t1}, v{t1}, v{t2}")
        a(f"s_lshl_b32 s{T}, s{S_PAR}, 6\nv_lshl_add_u32 v{t1}, v{t1}, 4, s{T}")
        a(f"s_movk_i32 s{T}, 7168\nv_mad_u32_u24 v{V_ED}, v{t0}, s{T}, v{t1}")
        a(f"s_mul_i32 s{T}, s{S_WAVE}, {6144 - 1024}\ns_sub_u32 s{S_EOFF}, 24576, s{T}")
        a(f"s_mov_b32 s{S_KE}, 0")
    a(f"s_mul_i32 s{S_WF}, s{S_WAVE}, 6144\ns_add_u32 s{S_WF}, s{S_WF}, {WS0}\ns_mov_b32 s{S_KW}, 0")
    a(flat(dma_w(typ)))
    if typ == "Y":
        srd_from(a, S_E, P_GATE, 2048)
        a(f"s_lshl_b32 s{T}, s{S_WAVE}, 9\ns_add_u32 m0, s{T}, {GATE_LDS}")
        a(f"v_lshl_add_u32 v{t0}, v0, 4, s{T}")
        a(f"s_mov_b32 exec_hi, 0\nbuffer_load_dwordx4 v{t0}, {sr(S_E, 4)}, 0 offen lds\ns_mov_b32 exec_hi, -1")
    a(f"s_add_u32 s{S_XF}, s{S_XF}, {XS}\ns_movk_i32 s{S_KX}, 128")
    a(flat(dma_x(typ)))
    a(f"s_add_u32 s{S_WF}, s{S_WF}, {WSZ}\ns_mov_b32 s{S_KW}, {64 * stride}")
    if typ == "A":
        a(f"s_mov_b32 s{S_KE}, {64 * 7168}")
    a(flat(dma_w(typ)))
    a(f"s_add_u32 s{S_XF}, s{S_XF}, {XS}\ns_movk_i32 s{S_KX}, 256")
    a(f"s_sub_u32 s{S_WF}, s{S_WF}, {WSZ}\ns_mov_b32 s{S_KW}, {128 * stride}")
    if typ == "A":
        a(f"s_mov_b32 s{S_KE}, {128 * 7168}")
    n, g, r, c = 206, 207, 208, 209
    a(f"v_and_b32 v{n}, 15, v0\nv_lshrrev_b32 v{g}, 4, v0\nv_bfe_u32 v{r}, v0, 2, 2\nv_and_b32 v{c}, 3, v0")
    a(f"v_lshrrev_b32 v{t0}, 1, v{n}\nv_xor_b32 v{t0}, v{g}, v{t0}\nv_lshlrev_b32 v{t0}, 4, v{t0}")
    a(f"v_lshl_add_u32 v{t0}, v{n}, 7, v{t0}")
    a(f"s_lshl_b32 s{T}, s{S_HALF}, 14")
    a(f"v_add_u32 v{V_XA0}, s{T}, v{t0}\nv_xor_b32 v{V_XA1}, 64, v{V_XA0}")
    if typ == "A":
        a(f"v_and_b32 v{t0}, 7, v{n}\nv_lshrrev_b32 v{t1}, 3, v{n}\nv_lshl_add_u32 v{t0}, v{t1}, 4, v{t0}\nv_add_u32 v{t0}, 104, v{t0}")
        a(f"v_add_u32 v{t1}, 256, v{n}")
        a(f"s_cmp_eq_u32 s{S_HALF}, 0\ns_cselect_b64 vcc, -1, 0\nv_cndmask_b32 v{t0}, v{t0}, v{t1}, vcc")
        a(f"v_bfe_u32 v{t1}, v{t0}, 1, 3\nv_xor_b32 v{t1}, v{g}, v{t1}\nv_lshlrev_b32 v{t1}, 4, v{t1}")
        a(f"v_lshl_add_u32 v{V_HA0}, v{t0}, 7, v{t1}\nv_xor_b32 v{V_HA1}, 64, v{V_HA0}")
    a(f"v_lshl_add_u32 v{t0}, v{g}, 3, v{r}")
    a(f"v_lshrrev_b32 v{t1}, 1, v{r}\nv_and_b32 v{t2}, 1, v{g}\nv_lshl_or_b32 v{t1}, v{t2}, 1, v{t1}")
    a(f"v_lshlrev_b32 v{t3}, 3, v{c}\nv_lshl_add_u32 v{t3}, v{t0}, 7, v{t3}")
    for b in range(6):
        if typ == "A":
            a(f"s_lshl_b32 s{T}, s{S_CH}, 1\ns_add_u32 s{T}, s{T}, {4 * (b >> 1) + (b & 1)}")
        elif typ == "Z":
            if b < 4:
                a(f"s_lshl_b32 s{T}, s{S_CH}, 2\ns_add_u32 s{T}, s{T}, {b}")
            else:
                a(f"s_lshl_b32 s{T}, s{S_CH}, 1\ns_add_u32 s{T}, s{T}, {8 + b - 4}")
        else:
            a(f"s_mul_i32 s{T}, s{S_CH}, 6\ns_add_u32 s{T}, s{T}, {b}")
        a(f"s_lshr_b32 s{T + 1}, s{T}, 2\ns_lshl_b32 s{T + 1}, s{T + 1}, 13\ns_add_u32 s{T + 1}, s{T + 1}, {WS0}\ns_and_b32 s{T}, s{T}, 3")
        a(f"v_xor_b32 v{t4}, s{T}, v{t1}\nv_lshl_add_u32 v{t4}, v{t4}, 5, v{t3}\nv_add_u32 v{V_WA + b}, s{T + 1}, v{t4}")
    if typ == "A":
        a(f"v_xor_b32 v{t4}, s{S_CH}, v{t2}\nv_lshlrev_b32 v{t4}, 5, v{t4}\nv_lshl_add_u32 v{t4}, v{t0}, 6, v{t4}")
        a(f"v_lshl_add_u32 v{t4}, v{c}, 3, v{t4}\nv_add_u32 v{V_EA}, {WS0 + 24576}, v{t4}")
        a(f"v_lshlrev_b32 v{t0}, 2, v{g}\nv_sub_u32 v{t0}, v{n}, v{t0}")
        a(f"v_lshlrev_b32 v{t5}, 2, v{g}")
        a(f"s_mov_b32 s{T}, {f2u(-1e9 * 32 ** 0.5):#x}\nv_mov_b32 v{t4}, s{T}")
        a(f"s_lshl_b32 s{T + 1}, s{S_HALF}, 7\ns_add_u32 s{T + 1}, s{T + 1}, s{S_T0}\ns_cmp_eq_u32 s{T + 1}, 0")
        a(f"s_cselect_b32 s{T + 1}, 0, -1\ns_mov_b32 s{T + 2}, s{T + 1}\ns_mov_b32 s{T + 3}, s{T + 1}")
        hm = T + 2
        assert hm % 2 == 1
        hm = T + 3
        a(f"s_mov_b32 s{hm + 1}, s{T + 1}")
        assert hm % 2 == 0
        for i in range(4):
            a(f"v_subrev_u32 v{t1}, {i}, v{t0}")
            a(f"v_cmp_gt_u32 vcc, 8, v{t1}\nv_cndmask_b32 v{i}, v{t4}, 0, vcc")
            a(f"v_cmp_ge_i32 vcc, -9, v{t1}\nv_cndmask_b32 v{4 + i}, v{t4}, 0, vcc")
            a(f"s_and_b64 vcc, vcc, {sr(hm, 2)}\nv_cndmask_b32 v{12 + i}, v{t4}, 0, vcc")
            a(f"v_cmp_ge_i32 vcc, -1, v{t1}\nv_add_u32 v{t2}, {i}, v{t5}\nv_cmp_gt_u32 {sr(T + 5, 2)}, 8, v{t2}")
            a(f"s_and_b64 vcc, vcc, {sr(T + 5, 2)}\ns_and_b64 vcc, vcc, {sr(hm, 2)}\nv_cndmask_b32 v{8 + i}, v{t4}, 0, vcc")
    elif typ == "Y":
        a(f"v_lshlrev_b32 v{t4}, 4, v{g}\nv_add_u32 v{V_EA}, {GATE_LDS}, v{t4}")
    srd_from(a, S_PF0, P_WSP, 2048 * 4096)
    srd_from(a, S_PF1, P_WO, 1024 * 2048)
    srd_from(a, S_PF2, P_WOUT, 1792 * 2048)
    a(f"s_mov_b32 s{S_J}, 0\ns_mov_b32 s{S_D0}, {XS}\ns_mov_b32 s{S_D1}, {XS}\ns_mov_b32 s{S_D2}, {-2 * XS}\ns_mov_b32 s{S_DW}, {WSZ}")


def prefetch_items():
    T = S_T
    return [f"v_mov_b32 v226, 0",
            f"buffer_load_dword v{V_C0}, v226, {sr(S_DBG, 4)}, 0 offen sc1",
            "v_mbcnt_lo_u32_b32 v224, -1, 0", "v_mbcnt_hi_u32_b32 v224, -1, v224",
            f"s_bfe_u32 s{T}, s2, 0x20001", f"s_lshl_b32 s{T}, s{T}, 9", f"s_lshr_b32 s{T + 1}, s2, 3", f"s_lshl_b32 s{T + 1}, s{T + 1}, 4",
            f"s_add_u32 s{T}, s{T}, s{T + 1}", f"s_lshl_b32 s{T + 1}, s{S_WAVE}, 2", f"s_add_u32 s{T}, s{T}, s{T + 1}",
            f"s_lshl_b32 s{T}, s{T}, 12", f"s_add_u32 s{T + 1}, s{T}, 8192",
            "v_lshlrev_b32 v225, 7, v224", "v_and_b32 v226, 0xf80, v225", "v_lshrrev_b32 v224, 5, v224", "v_lshl_add_u32 v224, v224, 12, v226",
            f"buffer_load_dword a160, v224, {sr(S_PF0, 4)}, s{T} offen",
            f"buffer_load_dword a161, v224, {sr(S_PF0, 4)}, s{T + 1} offen",
            f"s_lshl_b32 s{T + 2}, s{S_WAVE}, 8", f"s_add_u32 s{T + 2}, s{T + 2}, s2", f"s_lshl_b32 s{T + 2}, s{T + 2}, 13",
            f"v_add_u32 v225, s{T + 2}, v225", "v_subrev_u32 v226, 0x200000, v225",
            f"buffer_load_dword a162, v225, {sr(S_PF1, 4)}, 0 offen",
            f"buffer_load_dword a163, v226, {sr(S_PF2, 4)}, 0 offen"]


def step(a, typ, kind):
    nx = 9 if typ == "A" else 8
    stride = 6144 if typ == "A" else 7168
    dma = kind in ("first", "mid")
    m = mfma_list(typ, SET[0], zero=(kind == "first"))
    N = len(m)
    sl = Slots(N)
    if dma:
        dx = dma_x(typ)
        sl.chain(dx, 1, (N - 12) / len(dx))
    last = sl.chain(frag_reads(typ, 1), 0, 1)[-1]
    if kind != "last":
        upd = [f"v_add_u32 v{V_XA1}, s{S_D0}, v{V_XA1}", f"v_add_u32 v{V_XA0}, s{S_D0}, v{V_XA0}"]
        if typ == "A":
            upd += [f"v_add_u32 v{V_HA1}, s{S_D0}, v{V_HA1}", f"v_add_u32 v{V_HA0}, s{S_D0}, v{V_HA0}",
                    f"v_add_u32 v{V_EA}, s{S_DW}, v{V_EA}"]
        elif typ == "Y":
            upd += [f"v_add_u32 v{V_EA}, 128, v{V_EA}"]
        upd += [f"v_add_u32 v{V_WA + b}, s{S_DW}, v{V_WA + b}" for b in range(6)]
        sl.chain(upd, last + 1, 1)
    a(sl.emit(m))
    if kind == "last":
        a("s_waitcnt lgkmcnt(0)")
    else:
        a(f"s_waitcnt vmcnt({nx if dma else 0}) lgkmcnt(0)\ns_barrier")
    m = mfma_list(typ, SET[1])
    sl = Slots(N)
    lastw = last = 0
    if dma:
        dw = dma_w(typ)
        lastw = sl.chain(dw, 0, (N * 0.6) / len(dw))[-1]
    if kind != "last":
        last = sl.chain(frag_reads(typ, 0), 0, 1)[-1]
    book = []
    if dma:
        book += [f"s_add_u32 s{S_XF}, s{S_XF}, s{S_D2}", f"s_add_u32 s{S_KX}, s{S_KX}, 128",
                 f"s_add_u32 s{S_WF}, s{S_WF}, s{S_DW}", f"s_add_u32 s{S_KW}, s{S_KW}, {64 * stride}"]
        if typ == "A":
            book.append(f"s_add_u32 s{S_KE}, s{S_KE}, {64 * 7168}")
    if kind != "last":
        book += [f"s_sub_u32 s{S_DW}, 0, s{S_DW}", f"s_mov_b32 s{S_T}, s{S_D0}", f"s_mov_b32 s{S_D0}, s{S_D1}",
                 f"s_mov_b32 s{S_D1}, s{S_D2}", f"s_mov_b32 s{S_D2}, s{S_T}"]
    if kind == "mid":
        book += [f"s_add_u32 s{S_J}, s{S_J}, 1"]
    if kind == "pre":
        book += prefetch_items()
    sl.chain(book, max(lastw, last) + 1, 1)
    a(sl.emit(m))
    if kind != "last":
        a("s_waitcnt lgkmcnt(0)")


def mainloop(a, typ, tag, prof):
    nx = 9 if typ == "A" else 8
    nw = 7 if typ == "A" else 6
    a(f"s_waitcnt vmcnt({nx + nw})\ns_barrier")
    prof.stamp(a, 1)
    a(frag_reads(typ, 0))
    a("s_waitcnt lgkmcnt(0)")
    step(a, typ, "first")
    a.label(f"L_{tag}_loop")
    step(a, typ, "mid")
    a(f"s_cmp_lt_u32 s{S_J}, 13\ns_cbranch_scc1 L_{tag}_loop")
    step(a, typ, "pre")
    step(a, typ, "last")
    prof.stamp(a, 2)
    a("s_waitcnt vmcnt(4)")
    check(a, V_C0, ("ge", 64), f"s{S_TMP}")
    a(f"s_cbranch_scc1 L_{tag}_c0_out\nv_mov_b32 v226, 0")
    spin(a, f"L_{tag}_c0", f"buffer_load_dword v{V_C0}, v226, {sr(S_DBG, 4)}, 0 offen sc1", V_C0, ("ge", 64), f"s{S_CNT}", f"s{S_TMP}")


def set_flag(a, label, base, soff, vt):
    a(f"s_cmp_eq_u32 s{S_WAVE}, 0\ns_cbranch_scc0 {label}")
    a(f"v_mov_b32 v{vt}, {base:#x}\nv_mov_b32 v{vt + 1}, 1\ns_mov_b64 exec, 1")
    a(f"buffer_store_dword v{vt + 1}, v{vt}, {sr(S_WS, 4)}, {soff} offen sc1\ns_mov_b64 exec, -1")
    a.label(label)


def clear_slots(a):
    T = S_T
    for i in range(4):
        a(f"v_mov_b32 v{200 + i}, -1")
    a(f"v_lshlrev_b32 v204, 4, v0\nv_mov_b32 v205, 0")
    a(f"s_lshl_b32 s{T}, s{S_RB}, 1\ns_add_u32 s{T}, s{T}, s{S_PAR}")
    a(f"s_lshl_b32 s{T + 1}, s{T}, 14\ns_lshl_b32 s{T + 2}, s{S_WAVE}, 12\ns_add_u32 s{T + 1}, s{T + 1}, s{T + 2}\ns_add_u32 s{T + 1}, s{T + 1}, {WS_STATS:#x}")
    for i in range(4):
        off = f" offset:{i * 1024}" if i else ""
        a(f"buffer_store_dwordx4 v[200:203], v204, {sr(S_WS, 4)}, s{T + 1} offen{off} sc1")
    a(f"v_and_b32 v206, 31, v0\nv_lshlrev_b32 v206, 2, v206")
    a(f"s_lshl_b32 s{T + 1}, s{S_RB}, 7\ns_add_u32 s{T + 1}, s{T + 1}, {FL_F:#x}\ns_lshl_b32 s{T}, s{T}, 7\ns_add_u32 s{T}, s{T}, {FL_G:#x}")
    a(f"buffer_store_dword v205, v206, {sr(S_WS, 4)}, s{T + 1} offen sc1")
    a(f"buffer_store_dword v205, v206, {sr(S_WS, 4)}, s{T + 1} offen offset:1024 sc1")
    a(f"buffer_store_dword v205, v206, {sr(S_WS, 4)}, s{T} offen sc1")
    a(f"v_mov_b32 v206, 1\ns_waitcnt vmcnt(0)\ns_barrier\ns_mov_b64 exec, 1")
    a(f"buffer_atomic_add v206, v205, {sr(S_DBG, 4)}, 0 offen sc1\ns_mov_b64 exec, -1")


def lane16(a, v):
    a(f"v_mbcnt_lo_u32_b32 v{v}, -1, 0\nv_mbcnt_hi_u32_b32 v{v}, -1, v{v}")


def h1_stores(a, blocks, vaddr, tmp, s_fb0, sflags=""):
    T = S_T
    ncol = len(blocks[0])
    a(f"s_lshl_b32 s{T}, s{S_RB}, 3\ns_lshl_b32 s{T + 1}, s{S_HALF}, 2\ns_add_u32 s{T}, s{T}, s{T + 1}")
    a(f"s_mul_i32 s{T}, s{T}, 112\ns_add_u32 s{T}, s{T}, {s_fb0}\ns_lshl_b32 s{T}, s{T}, 10\ns_add_u32 s{T}, s{T}, {WS_H1:#x}")
    k = 0
    for i in range(4):
        for c in range(ncol):
            t = tmp[k % len(tmp)]
            k += 1
            srcs = []
            for par in range(2):
                b = blocks[2 * i + par][c]
                if isinstance(b, tuple):
                    u = tmp[k % len(tmp)]
                    k += 1
                    for e in range(4):
                        a(f"v_accvgpr_read_b32 v{u + e}, a{b[1] + e}")
                    b = u
                srcs.append(b)
            for par in range(2):
                a(f"v_cvt_pk_bf16_f32 v{t + 2 * par}, v{srcs[par]}, v{srcs[par] + 1}")
                a(f"v_cvt_pk_bf16_f32 v{t + 2 * par + 1}, v{srcs[par] + 2}, v{srcs[par] + 3}")
            if c >= 4 and c % 4 == 0:
                a(f"s_add_u32 s{T + 1}, s{T}, {c * 1024}")
            so = T if c < 4 else T + 1
            off = f" offset:{(c % 4) * 1024}" if c % 4 else ""
            a(f"buffer_store_dwordx4 {vr(t, 4)}, v{vaddr}, {sr(S_WS, 4)}, s{so} offen{off} {sflags}")
        if i < 3:
            a(f"s_add_u32 s{T}, s{T}, {112 * 1024}")


def epilogue_A(a, prof, sflags=""):
    T = S_T
    Q, K, V = ACC, ACC + 64, ACC + 136
    VL = 224
    lane16(a, VL)
    a(f"v_lshlrev_b32 v{VL}, 4, v{VL}")
    a(f"s_lshl_b32 s{T + 8}, s{S_PAR}, 1\ns_add_u32 s{T + 8}, s{T + 8}, s{S_CH}")
    h1_stores(a, [[("a", A_EX + 4 * tb)] for tb in range(8)], VL, [228, 232, 236, 240, 244, 248], f"s{T + 8}", sflags)
    for i in range(32):
        a(f"v_cvt_pk_bf16_f32 v{Q + i}, v{Q + 2 * i}, v{Q + 2 * i + 1}")
    for i in range(36):
        a(f"v_cvt_pk_bf16_f32 v{K + i}, v{K + 2 * i}, v{K + 2 * i + 1}")
    varr = {(0, 0): Q + 32, (0, 1): Q + 42, (1, 0): Q + 52, (1, 1): K + 36}
    for par in range(2):
        for c in range(2):
            d = varr[(par, c)]
            for pos, tb in enumerate([8, par, par + 2, par + 4, par + 6]):
                s = V + (tb * 2 + c) * 4
                a(f"v_cvt_pk_bf16_f32 v{d + 2 * pos}, v{s}, v{s + 1}")
                a(f"v_cvt_pk_bf16_f32 v{d + 2 * pos + 1}, v{s + 2}, v{s + 3}")
    ONES = K + 48
    for i in range(4):
        a(f"v_mov_b32 v{ONES + i}, 0x3f803f80")
    cs = 32 ** -0.5 * 1.4426950408889634
    SC = T + 3
    assert SC % 2 == 0
    a(f"s_mov_b32 s{SC}, {f2u(cs):#x}\ns_mov_b32 s{SC + 1}, {f2u(cs):#x}")
    a(f"s_lshl_b32 s{T}, s{S_RB}, 3\ns_lshl_b32 s{T + 1}, s{S_HALF}, 2\ns_add_u32 s{T}, s{T}, s{T + 1}")
    a(f"s_mul_i32 s{T}, s{T}, 88\ns_add_u32 s{T}, s{T}, s{T + 8}\ns_lshl_b32 s{T}, s{T}, 11")
    if WS_ACT:
        a(f"s_add_u32 s{T}, s{T}, {WS_ACT:#x}")
    S, O, SM, MX = V, V + 32, 228, 244
    for batch in range(2):
        tbs = [4 * batch + i for i in range(4)]
        for i, tb in enumerate(tbs):
            prev = 8 if tb < 2 else tb - 2
            bias = (8 + 4 * tb) if tb < 2 else 4
            a(mfma(vr(S + 8 * i, 4), vr(K + 4 * prev, 4), vr(Q + 4 * tb, 4), vr(bias, 4)))
            a(mfma(vr(S + 8 * i + 4, 4), vr(K + 4 * tb, 4), vr(Q + 4 * tb, 4), vr(0, 4)))
        for step in range(4):
            for i in range(4):
                s, mx = S + 8 * i, MX + 2 * i
                if step == 0:
                    a(f"v_max3_f32 v{mx}, v{s}, v{s + 1}, v{s + 2}")
                elif step < 3:
                    a(f"v_max3_f32 v{mx}, v{mx}, v{s + 2 * step + 1}, v{s + 2 * step + 2}")
                else:
                    a(f"v_max_f32 v{mx}, v{mx}, v{s + 7}")
        for sw in ("v_permlane32_swap_b32", "v_permlane16_swap_b32"):
            for i in range(4):
                a(f"v_mov_b32 v{MX + 2 * i + 1}, v{MX + 2 * i}")
            for i in range(4):
                a(f"{sw} v{MX + 2 * i}, v{MX + 2 * i + 1}")
            for i in range(4):
                a(f"v_max_f32 v{MX + 2 * i}, v{MX + 2 * i}, v{MX + 2 * i + 1}")
        for i in range(4):
            a(f"v_mul_f32 v{MX + 2 * i}, {f2u(-cs):#x}, v{MX + 2 * i}")
        for i in range(4):
            for e in range(4):
                p = S + 8 * i + 2 * e
                a(f"v_pk_fma_f32 {vr(p, 2)}, {vr(p, 2)}, {sr(SC, 2)}, {vr(MX + 2 * i, 2)} op_sel_hi:[1,1,0]")
        for i in range(4):
            for e in range(8):
                a(f"v_exp_f32 v{S + 8 * i + e}, v{S + 8 * i + e}")
        for i in range(4):
            for e in range(4):
                a(f"v_cvt_pk_bf16_f32 v{S + 8 * i + e}, v{S + 8 * i + 2 * e}, v{S + 8 * i + 2 * e + 1}")
        for i, tb in enumerate(tbs):
            par, pos = tb & 1, tb >> 1
            a(mfma(vr(SM + 4 * i, 4), vr(ONES, 4), vr(S + 8 * i, 4), "0"))
            for c in range(2):
                a(mfma(vr(O + 8 * i + 4 * c, 4), vr(varr[(par, c)] + 2 * pos, 4), vr(S + 8 * i, 4), "0"))
        for i in range(4):
            a(f"v_rcp_f32 v{SM + 4 * i}, v{SM + 4 * i}")
        for i in range(4):
            for e in range(4):
                p = O + 8 * i + 2 * e
                a(f"v_pk_mul_f32 {vr(p, 2)}, {vr(p, 2)}, {vr(SM + 4 * i, 2)} op_sel_hi:[1,0]")
        for i, tb in enumerate(tbs):
            for e in range(4):
                a(f"v_cvt_pk_bf16_f32 v{O + 8 * i + e}, v{O + 8 * i + 2 * e}, v{O + 8 * i + 2 * e + 1}")
            off = f" offset:{(tb & 1) * 1024}" if tb & 1 else ""
            a(f"buffer_store_dwordx4 {vr(O + 8 * i, 4)}, v{VL}, {sr(S_WS, 4)}, s{T} offen{off} {sflags}")
            if tb & 1 and tb < 7:
                a(f"s_add_u32 s{T}, s{T}, {88 * 2048}")
        if batch == 0:
            a("s_waitcnt vmcnt(4)\ns_barrier")
            set_flag(a, "L_p1a_hflag", FL_H, f"s{S_FOFF}", 252)


def epilogue_Y(a, prof, sflags=""):
    T = S_T
    VL = 224
    lane16(a, VL)
    a(f"v_and_b32 v{VL + 1}, 15, v{VL}\nv_lshlrev_b32 v{VL}, 4, v{VL}")
    a(f"s_mul_i32 s{T + 8}, s{S_PAR}, 12\ns_mul_i32 s{T + 7}, s{S_CH}, 6\ns_add_u32 s{T + 8}, s{T + 8}, s{T + 7}\ns_add_u32 s{T + 8}, s{T + 8}, 88")
    h1_stores(a, [[ACC + (tb * 6 + c) * 4 for c in range(6)] for tb in range(8)], VL, [228, 232, 236, 240], f"s{T + 8}", sflags)
    G = 0
    for tb in range(8):
        a(f"v_accvgpr_read_b32 v{G + tb}, a{A_EX + 4 * tb}")
    for tb in range(8):
        a(f"v_mul_f32 v{G + tb}, {f2u(-1.4426950408889634):#x}, v{G + tb}")
    for tb in range(8):
        a(f"v_exp_f32 v{G + tb}, v{G + tb}")
    for tb in range(8):
        a(f"v_add_f32 v{G + tb}, 1.0, v{G + tb}")
    for tb in range(8):
        a(f"v_rcp_f32 v{G + tb}, v{G + tb}")
    a(f"v_lshlrev_b32 v{VL + 1}, 3, v{VL + 1}")
    a(f"s_lshl_b32 s{T}, s{S_HALF}, 7\ns_add_u32 s{T}, s{T}, s{S_T0}\ns_lshl_b32 s{T}, s{T}, 2\ns_add_u32 s{T}, s{T}, {WS_GATE:#x}")
    for i in range(4):
        off = f" offset:{i * 128}" if i else ""
        a(f"buffer_store_dwordx2 {vr(G + 2 * i, 2)}, v{VL + 1}, {sr(S_WS, 4)}, s{T} offen{off} {sflags}")


def epilogue_Z(a, tag, prof, sflags=""):
    T = S_T
    Z, H = ACC, ACC + 128
    VL, VK = 224, 226
    ST = 208
    lane16(a, VL)
    a(f"v_mov_b32 v{VK}, {f2u(GELU_C1):#x}\nv_mov_b32 v{VK + 1}, {f2u(GELU_C0):#x}")
    tmps = [228 + 2 * i for i in range(8)]
    SP, QP = 244, 246
    for tb in range(8):
        xs = [Z + tb * 16 + 2 * i for i in range(8)]
        a(gelu_pairs(xs, tmps, VK))
        a(f"v_pk_add_f32 {vr(SP, 2)}, {vr(xs[0], 2)}, {vr(xs[1], 2)}")
        a(f"v_pk_mul_f32 {vr(QP, 2)}, {vr(xs[0], 2)}, {vr(xs[0], 2)}")
        for i in range(1, 8):
            if i > 1:
                a(f"v_pk_add_f32 {vr(SP, 2)}, {vr(SP, 2)}, {vr(xs[i], 2)}")
            a(f"v_pk_fma_f32 {vr(QP, 2)}, {vr(xs[i], 2)}, {vr(xs[i], 2)}, {vr(QP, 2)}")
        a(f"v_add_f32 v{ST + tb}, v{SP}, v{SP + 1}\nv_add_f32 v{ST + 8 + tb}, v{QP}, v{QP + 1}")
    for i in range(8):
        a(f"v_permlane32_swap_b32 v{ST + i}, v{ST + 8 + i}")
    for i in range(8):
        a(f"v_add_f32 v{ST + i}, v{ST + i}, v{ST + 8 + i}")
    for i in range(4):
        a(f"v_permlane16_swap_b32 v{ST + i}, v{ST + 4 + i}")
    for i in range(4):
        a(f"v_add_f32 v{ST + i}, v{ST + i}, v{ST + 4 + i}")
    prof.stamp(a, 3)
    LB = XS
    a(f"v_lshlrev_b32 v{VL + 1}, 4, v{VL}")
    a(f"s_lshl_b32 s{T}, s{S_WAVE}, 10\ns_add_u32 s{T}, s{T}, {LB}\nv_add_u32 v228, s{T}, v{VL + 1}")
    a(f"ds_write_b128 v228, {vr(ST, 4)}\nv_xor_b32 v229, 0x400, v228")
    a(f"s_lshl_b32 s{T + 7}, s{S_RB}, 1\ns_add_u32 s{T + 7}, s{T + 7}, s{S_HALF}\ns_lshl_b32 s{T + 7}, s{T + 7}, 14\ns_add_u32 s{T + 7}, s{T + 7}, {WS_STATS:#x}")
    a(f"s_lshl_b32 s{T + 5}, s{S_PAR}, 10\ns_add_u32 s{T + 5}, s{T + 5}, s{T + 7}")
    a("s_waitcnt lgkmcnt(0)\ns_barrier")
    a(f"ds_read_b128 {vr(ST + 4, 4)}, v229\ns_waitcnt lgkmcnt(0)")
    a(f"v_pk_add_f32 {vr(ST, 2)}, {vr(ST, 2)}, {vr(ST + 4, 2)}\nv_pk_add_f32 {vr(ST + 2, 2)}, {vr(ST + 2, 2)}, {vr(ST + 6, 2)}")
    a(f"s_cmp_eq_u32 s{S_CH}, 0\ns_cbranch_scc0 L_{tag}_nopub")
    a(f"buffer_store_dwordx4 {vr(ST, 4)}, v{VL + 1}, {sr(S_WS, 4)}, s{T + 5} offen sc1")
    a.label(f"L_{tag}_nopub")
    a(f"s_lshl_b32 s{T + 8}, s{S_PAR}, 2\ns_lshl_b32 s{T + 4}, s{S_CH}, 1\ns_add_u32 s{T + 8}, s{T + 8}, s{T + 4}\ns_add_u32 s{T + 8}, s{T + 8}, 32")
    h1_stores(a, [[H + (tb * 2 + c) * 4 for c in range(2)] for tb in range(8)], VL + 1, [232, 236, 240, 244], f"s{T + 8}", sflags)
    a(f"s_mul_i32 s{T}, s{S_CH}, {7 * 1024}\ns_add_u32 s{T + 6}, s{T + 7}, s{T}\ns_add_u32 s{T + 5}, s{T + 6}, 4096")
    loads = [f"buffer_load_dwordx4 {vr(H + 4 * i, 4)}, v{VL + 1}, {sr(S_WS, 4)}, s{T + 6 if i < 4 else T + 5} offen"
             + (f" offset:{(i % 4) * 1024}" if i % 4 else "") + " sc1" for i in range(7)]
    tree = [f"v_max3_u32 v229, v{H}, v{H + 1}, v{H + 2}"] + [f"v_max3_u32 v229, v229, v{H + i}, v{H + i + 1}" for i in range(3, 27, 2)] \
        + [f"v_max_u32 v229, v229, v{H + 27}"]
    spin(a, f"L_{tag}_gather", loads, 229, ("no_sentinel", tree), f"s{S_CNT}", f"s{S_TMP}")
    prof.stamp(a, 4)
    for i in range(1, 7):
        a(f"v_pk_add_f32 {vr(H, 2)}, {vr(H, 2)}, {vr(H + 4 * i, 2)}")
        a(f"v_pk_add_f32 {vr(H + 2, 2)}, {vr(H + 2, 2)}, {vr(H + 4 * i + 2, 2)}")
    a(f"ds_write_b128 v228, {vr(H, 4)} offset:4096")
    a(f"v_and_b32 v229, 15, v{VL}\nv_lshlrev_b32 v228, 4, v229\ns_lshl_b32 s{T}, s{S_HALF}, 11\ns_add_u32 s{T}, s{T}, {LB + 4096}\nv_add_u32 v228, s{T}, v228")
    a("s_waitcnt lgkmcnt(0)\ns_barrier")
    for ch in range(2):
        for ro in range(4):
            a(f"ds_read_b128 {vr(H + 16 * ch + 4 * ro, 4)}, v228 offset:{ch * 1024 + ro * 256}")
    set_flag(a, f"L_{tag}_hflag", FL_H, f"s{S_FOFF}", 252)
    a(f"v_bfe_u32 v230, v{VL}, 4, 1\nv_and_b32 v231, 1, v229\nv_lshl_or_b32 v230, v231, 1, v230")
    a(f"v_bfe_u32 v231, v229, 2, 1\nv_lshl_or_b32 v230, v231, 2, v230\nv_bfe_u32 v231, v229, 1, 1\nv_lshl_or_b32 v230, v231, 3, v230")
    a(f"v_lshrrev_b32 v231, 3, v229\nv_lshl_or_b32 v230, v231, 4, v230\nv_lshlrev_b32 v230, 5, v230")
    a(f"v_lshrrev_b32 v231, 5, v{VL}\nv_lshl_or_b32 v230, v231, 4, v230")
    a(f"s_lshl_b32 s{T}, s{S_PAR}, 3\ns_lshl_b32 s{T + 1}, s{S_CH}, 2\ns_add_u32 s{T}, s{T}, s{T + 1}\ns_lshl_b32 s{T}, s{T}, 16")
    a(f"s_lshl_b32 s{T + 1}, s{S_HALF}, 7\ns_add_u32 s{T + 1}, s{T + 1}, s{S_T0}\ns_lshl_b32 s{T + 1}, s{T + 1}, 5")
    a(f"s_add_u32 s{T}, s{T}, s{T + 1}\ns_add_u32 s{T}, s{T}, {WS_Z2N:#x}")
    a("s_waitcnt lgkmcnt(0)")
    for i in range(8):
        a(f"v_pk_add_f32 {vr(H + 2 * i, 2)}, {vr(H + 2 * i, 2)}, {vr(H + 16 + 2 * i, 2)}")
    a(f"s_mov_b32 s{T + 3}, {f2u(1.0 / 1792):#x}\ns_mov_b32 s{T + 4}, {f2u(1.0 / 1792):#x}")
    for i in range(8):
        a(f"v_pk_mul_f32 {vr(H + 2 * i, 2)}, {vr(H + 2 * i, 2)}, {sr(T + 3, 2)}")
    for tb in range(8):
        a(f"v_fma_f32 v{H + 8 + tb}, -v{H + tb}, v{H + tb}, v{H + 8 + tb}")
    for tb in range(8):
        a(f"v_max_f32 v{H + 8 + tb}, 0, v{H + 8 + tb}")
    for tb in range(8):
        a(f"v_add_f32 v{H + 8 + tb}, {f2u(1e-5):#x}, v{H + 8 + tb}")
    for tb in range(8):
        a(f"v_rsq_f32 v{H + 16 + 2 * tb}, v{H + 8 + tb}")
    for tb in range(8):
        a(f"v_mul_f32 v{H + 17 + 2 * tb}, v{H + tb}, v{H + 16 + 2 * tb}")
    k = 0
    for c in range(4):
        for i in range(4):
            t = [232, 236, 240, 244, 248][k % 5]
            k += 1
            for par in range(2):
                tb = 2 * i + par
                ab = vr(H + 16 + 2 * tb, 2)
                for e in range(2):
                    p = Z + (tb * 4 + c) * 4 + 2 * e
                    a(f"v_pk_fma_f32 {vr(p, 2)}, {vr(p, 2)}, {ab}, {ab} op_sel:[0,0,1] op_sel_hi:[1,0,1] neg_lo:[0,0,1] neg_hi:[0,0,1]")
            for par in range(2):
                tb = 2 * i + par
                for e in range(2):
                    p = Z + (tb * 4 + c) * 4 + 2 * e
                    a(f"v_cvt_pk_bf16_f32 v{t + 2 * par + e}, v{p}, v{p + 1}")
            a(f"v_permlane16_swap_b32 v{t}, v{t + 2}\nv_permlane16_swap_b32 v{t + 1}, v{t + 3}")
            off = f" offset:{i * 1024}" if i else ""
            a(f"buffer_store_dwordx4 {vr(t, 4)}, v230, {sr(S_WS, 4)}, s{T} offen{off} {sflags}")
        if c < 3:
            a(f"s_add_u32 s{T}, s{T}, 65536")


def phase1(a, prof):
    T = S_T
    a(f"v_lshrrev_b32 v1, 6, v0\nv_and_b32 v0, 63, v0")
    a(f"v_readfirstlane_b32 s{S_WAVE}, v1")
    a(f"s_and_b32 s{T}, s2, 7\ns_lshr_b32 s{T + 1}, s2, 3")
    a(f"s_and_b32 s{S_RB}, s{T}, 1\ns_lshl_b32 s{S_RB}, s{S_RB}, 2\ns_and_b32 s{T + 2}, s{T + 1}, 3\ns_add_u32 s{S_RB}, s{S_RB}, s{T + 2}")
    a(f"s_lshl_b32 s{S_T0}, s{S_RB}, 8\ns_lshl_b32 s{S_FOFF}, s{S_RB}, 7")
    a(f"s_lshr_b32 s{T}, s{T}, 1\ns_lshr_b32 s{T + 1}, s{T + 1}, 2")
    a(f"s_and_b32 s{S_CH}, s{S_WAVE}, 1\ns_lshr_b32 s{S_HALF}, s{S_WAVE}, 1")
    a(f"s_lshl_b32 s{T + 2}, s{T}, 2\ns_add_u32 s{T + 2}, s{T + 2}, s{T + 1}")
    a("s_waitcnt lgkmcnt(0)")
    srd_from(a, S_WS, P_WS, 0x10000000)
    srd_from(a, S_DBG, P_DBG, 256)
    a(f"s_cmp_ge_u32 s{T + 1}, 4\ns_cbranch_scc1 L_p1_notA")
    a(f"s_mov_b32 s{S_PAR}, s{T + 2}\ns_lshl_b32 s{T}, s{S_PAR}, 2\ns_add_u32 s{S_FOFF}, s{S_FOFF}, s{T}")
    setup(a, "A", "p1a")
    mainloop(a, "A", "p1a", prof)
    epilogue_A(a, prof, SF)
    a("s_branch L_p1_done")
    a.label("L_p1_notA")
    a(f"s_cmp_lt_u32 s{T}, 2\ns_cbranch_scc1 L_p1_Z\ns_cmp_eq_u32 s{T + 1}, 7\ns_cbranch_scc0 L_p1_Z")
    a(f"s_sub_u32 s{S_PAR}, s{T}, 2\ns_add_u32 s{T}, s{S_PAR}, 30\ns_lshl_b32 s{T}, s{T}, 2\ns_add_u32 s{S_FOFF}, s{S_FOFF}, s{T}")
    clear_slots(a)
    setup(a, "Y", "p1y")
    mainloop(a, "Y", "p1y", prof)
    epilogue_Y(a, prof, SF)
    a("s_waitcnt vmcnt(0)\ns_barrier")
    set_flag(a, "L_p1y_hflag", FL_H, f"s{S_FOFF}", 252)
    a("s_branch L_p1_done")
    a.label("L_p1_Z")
    a(f"s_max_u32 s{T}, s{T}, 2\ns_sub_u32 s{T}, s{T}, 2\ns_sub_u32 s{S_PAR}, s{T + 2}, 4\ns_sub_u32 s{S_PAR}, s{S_PAR}, s{T}")
    a(f"s_add_u32 s{T}, s{S_PAR}, 16\ns_lshl_b32 s{T}, s{T}, 2\ns_add_u32 s{S_FOFF}, s{S_FOFF}, s{T}")
    setup(a, "Z", "p1z")
    mainloop(a, "Z", "p1z", prof)
    epilogue_Z(a, "p1z", prof, SF)
    a.label("L_p1_done")
    prof.stamp(a, 5)
```

```python
from common import *
from phase1 import (S_WAVE, S_T, S_WS, S_FOFF, S_CNT, S_TMP, SF, P_WSP, P_BSP, P_WS, lane16, flat, set_flag)
import phase3

STG = 30720
NSTG = 5
S_A, S_B, S_BS = 4, 8, 12
S_TI, S_FJ, S_HALF, S_KH = 25, 26, 50, 51
S_KA, S_KB, S_FILL, S_RD, S_CA, S_CB, S_J, S_D = 28, 29, 32, 33, 34, 35, 36, 37
S_TG = 54
S_FRB = 52
ACC = 0
V_AD, V_BD = 112, 116
V_LO, V_HI, V_ZB = 120, 121, 122
V_L = 123
V_FA, V_FX = 124, 125
V_H1 = 128
V_BSP = 156
V_T = 160
GZ = 176
SET = [0, 64]


def acc(i, c):
    return ACC + (i * 7 + c) * 4


def mfmas(s):
    return [mfma(vr(acc(i, c), 4), ar(s + 16 + 4 * c, 4), ar(s + 4 * i, 4)) for i in range(4) for c in range(7)]


def reads(s):
    ws = [f"ds_read_b128 {ar(s + 4 * i, 4)}, v{V_LO if i < 2 else V_HI} offset:{(i & 1) * 2048}" for i in range(4)]
    zs = [f"ds_read_b64_tr_b16 {ar(s + 16 + 4 * c + 2 * h, 2)}, v{V_ZB} offset:{c * 2048 + h * 256}" for c in range(7) for h in range(2)]
    return [ws[0]] + zs + ws[1:]


def dma_a():
    o = [f"s_add_u32 m0, s{S_FILL}, s{S_CA}"]
    for q in range(4):
        off = f" offset:{q * 1024}" if q else ""
        o.append(f"buffer_load_dwordx4 v{V_AD + q}, {sr(S_A, 4)}, s{S_KA} offen{off} lds")
    return o


def dma_b():
    o = [f"s_add_u32 m0, s{S_FILL}, s{S_CB}"]
    for q in range(3):
        off = f" offset:{q * 1024}" if q else ""
        o.append(f"buffer_load_dwordx4 v{V_BD + q}, {sr(S_B, 4)}, s{S_KB} offen{off} {SF} lds")
    o.append(["s_mov_b32 exec_hi, 0", f"buffer_load_dwordx4 v{V_BD + 3}, {sr(S_B, 4)}, s{S_KB} offen offset:3072 {SF} lds",
              "s_mov_b32 exec_hi, -1"])
    return o


def setup(a):
    T = S_T
    t0, t1, t2, t3, t4 = V_T, V_T + 1, V_T + 2, V_T + 3, V_T + 4
    L = V_L
    lane16(a, L)
    a(f"s_and_b32 s{T}, s2, 7\ns_lshr_b32 s{T + 1}, s2, 3")
    a(f"s_lshr_b32 s{S_TI}, s{T}, 1\ns_lshl_b32 s{S_TI}, s{S_TI}, 2\ns_and_b32 s{T + 2}, s{T + 1}, 3\ns_add_u32 s{S_TI}, s{S_TI}, s{T + 2}")
    a(f"s_and_b32 s{S_FJ}, s{T}, 1\ns_lshl_b32 s{S_FJ}, s{S_FJ}, 3\ns_lshr_b32 s{T + 2}, s{T + 1}, 2\ns_add_u32 s{S_FJ}, s{S_FJ}, s{T + 2}")
    a(f"s_lshr_b32 s{S_FRB}, s{S_TI}, 1\ns_lshl_b32 s{S_FRB}, s{S_FRB}, 7")
    a(f"v_and_b32 v{V_FA}, 31, v{L}\nv_lshlrev_b32 v{V_FA}, 2, v{V_FA}\nv_add_u32 v{V_FA}, {FL_F:#x}, v{V_FA}")
    a(f"buffer_load_dword v{V_FX}, v{V_FA}, {sr(S_WS, 4)}, s{S_FRB} offen offset:1024 sc1")
    a(f"s_and_b32 s{S_HALF}, s{S_WAVE}, 1\ns_lshr_b32 s{S_KH}, s{S_WAVE}, 1")
    srd_from(a, S_A, P_WSP, 2048 * 4096)
    srd_from(a, S_B, P_WS, SZ_Z2N, WS_Z2N)
    srd_from(a, S_BS, P_BSP, 4096)
    a(f"v_lshrrev_b32 v{t0}, 3, v{L}\nv_and_b32 v{t1}, 7, v{L}\nv_lshrrev_b32 v{t2}, 1, v{t0}")
    a(f"v_xor_b32 v{t3}, v{t1}, v{t2}\nv_xor_b32 v{t4}, 4, v{t3}\nv_lshlrev_b32 v{t0}, 13, v{t0}")
    a(f"v_lshl_add_u32 v{t3}, v{t3}, 4, v{t0}\nv_lshl_add_u32 v{t4}, v{t4}, 4, v{t0}")
    a(f"s_lshl_b32 s{T}, s{S_TI}, 7\ns_lshl_b32 s{T + 1}, s{S_WAVE}, 5\ns_add_u32 s{T}, s{T}, s{T + 1}\ns_lshl_b32 s{T}, s{T}, 12")
    for i in range(4):
        tok = 16 * (i & 1) + (i >> 1)
        a(f"s_add_u32 s{T + 1}, s{T}, {tok * 4096 - i * 1024}")
        a(f"v_add_u32 v{V_AD + i}, s{T + 1}, v{t4 if i & 1 else t3}")
    a(f"s_mul_i32 s{T}, s{S_WAVE}, 3584\ns_and_b32 s{T + 1}, s{S_FJ}, 1\ns_mul_i32 s{T + 2}, s{S_FJ}, 7")
    a(f"v_lshl_add_u32 v{t0}, v{L}, 4, s{T}")
    for e in range(4):
        a(f"v_add_u32 v{t1}, {e * 1024}, v{t0}" if e else f"v_mov_b32 v{t1}, v{t0}")
        a(f"v_lshrrev_b32 v{t2}, 11, v{t1}\nv_and_b32 v{t1}, 0x7ff, v{t1}\nv_add_u32 v{t2}, s{T + 1}, v{t2}")
        a(f"v_cmp_eq_u32 vcc, 7, v{t2}\nv_cndmask_b32 v{t2}, v{t2}, 0, vcc\nv_add_u32 v{t2}, s{T + 2}, v{t2}")
        a(f"v_lshl_add_u32 v{t1}, v{t2}, 16, v{t1}")
        a(f"v_subrev_u32 v{V_BD + e}, {e * 1024}, v{t1}" if e else f"v_mov_b32 v{V_BD}, v{t1}")
    a(f"s_lshl_b32 s{S_CA}, s{S_WAVE}, 12\ns_add_u32 s{S_CB}, s{T}, 16384")
    n, g, r, c = V_T + 5, V_T + 6, V_T + 7, V_T + 8
    a(f"v_and_b32 v{n}, 15, v{L}\nv_lshrrev_b32 v{g}, 4, v{L}\nv_bfe_u32 v{r}, v{L}, 2, 2\nv_and_b32 v{c}, 3, v{L}")
    a(f"s_lshl_b32 s{T}, s{S_KH}, 2\nv_add_u32 v{t0}, s{T}, v{g}\nv_lshrrev_b32 v{t1}, 1, v{n}\nv_xor_b32 v{t0}, v{t0}, v{t1}")
    a(f"v_lshlrev_b32 v{t0}, 4, v{t0}\nv_lshl_add_u32 v{t0}, v{n}, 7, v{t0}")
    a(f"s_lshl_b32 s{T}, s{S_HALF}, 13\ns_lshl_b32 s{T + 1}, s{S_KH}, 12\ns_add_u32 s{T}, s{T}, s{T + 1}")
    a(f"v_add_u32 v{V_LO}, s{T}, v{t0}\nv_xor_b32 v{V_HI}, 0x1000, v{V_LO}")
    a(f"v_lshrrev_b32 v{t0}, 1, v{g}\nv_and_b32 v{t1}, 1, v{g}\nv_lshl_add_u32 v{t1}, v{t1}, 2, v{r}\nv_lshl_add_u32 v{t0}, v{t0}, 4, v{t1}")
    a(f"v_lshlrev_b32 v{t0}, 5, v{t0}\nv_lshl_add_u32 v{t0}, v{c}, 3, v{t0}")
    a(f"s_lshl_b32 s{T}, s{S_KH}, 10\ns_add_u32 s{T}, s{T}, 16384\nv_add_u32 v{V_ZB}, s{T}, v{t0}")
    a(f"s_lshl_b32 s{S_TG}, s{S_TI}, 2\ns_lshl_b32 s{T}, s{S_HALF}, 1\ns_add_u32 s{S_TG}, s{S_TG}, s{T}\ns_add_u32 s{S_TG}, s{S_TG}, s{S_KH}")
    a(f"v_and_b32 v{t0}, 1, v{L}\nv_mul_u32_u24 v{t0}, 6, v{t0}\nv_add_u32 v{t0}, s{T + 2}, v{t0}\nv_lshrrev_b32 v{t0}, 3, v{t0}")
    a(f"v_bfe_u32 v{t1}, v{L}, 1, 3\nv_lshlrev_b32 v{t1}, 7, v{t1}\nv_lshl_add_u32 v{t0}, v{t0}, 2, v{t1}")
    a(f"v_add_u32 v{V_T + 9}, {FL_F + 64:#x}, v{t0}")
    a(f"v_lshlrev_b32 v{V_T + 10}, 4, v{L}\nv_lshlrev_b32 v{V_T + 11}, 2, v{n}")


def transition(a, prof):
    T = S_T
    setup(a)
    a("s_waitcnt vmcnt(0)\ns_barrier")
    set_flag(a, "L_t1_fflag", FL_F, f"s{S_FOFF}", 252)
    prof.stamp(a, 6)
    check(a, V_FX, ("all_nonzero",), f"s{S_TMP}")
    a("s_cbranch_scc1 L_t1_h_out")
    spin(a, "L_t1_h", f"buffer_load_dword v{V_FX}, v{V_FA}, {sr(S_WS, 4)}, s{S_FRB} offen offset:1024 sc1", V_FX, ("all_nonzero",),
         f"s{S_CNT}", f"s{S_TMP}")
    VA = V_T + 10
    a(f"s_mul_i32 s{T}, s{S_TG}, 112\ns_mul_i32 s{T + 1}, s{S_FJ}, 7\ns_add_u32 s{T}, s{T}, s{T + 1}\ns_lshl_b32 s{T}, s{T}, 10\ns_add_u32 s{T}, s{T}, {WS_H1:#x}")
    a(f"s_and_b32 s{T + 2}, s{S_FJ}, 1\ns_lshl_b32 s{T + 3}, s{T + 2}, 10\ns_add_u32 s{T + 3}, s{T + 3}, s{T}")
    a(f"s_add_u32 s{T + 4}, s{T + 3}, 4096")
    a(f"s_cmp_eq_u32 s{T + 2}, 0\ns_cselect_b32 s{T + 5}, 6144, 0\ns_add_u32 s{T + 5}, s{T + 5}, s{T}")
    for c in range(6):
        off = f" offset:{(c % 4) * 1024}" if c % 4 else ""
        a(f"buffer_load_dwordx4 {vr(V_H1 + 4 * c, 4)}, v{VA}, {sr(S_WS, 4)}, s{T + 3 if c < 4 else T + 4} offen{off} {SF}")
    a(f"buffer_load_dwordx4 {vr(V_H1 + 24, 4)}, v{VA}, {sr(S_WS, 4)}, s{T + 5} offen {SF}")
    a(f"s_lshl_b32 s{T}, s{S_TG}, 6\nbuffer_load_dword v{V_BSP}, v{V_T + 11}, {sr(S_BS, 4)}, s{T} offen")
    for st in range(2):
        a(f"s_mov_b32 s{S_FILL}, {st * STG}\ns_mov_b32 s{S_KA}, {st * 128}")
        a(dma_a())
    VK = V_T + 12
    a(f"v_mov_b32 v{VK}, {f2u(GELU_C1):#x}\nv_mov_b32 v{VK + 1}, {f2u(GELU_C0):#x}")
    tmps = [232 + 2 * i for i in range(8)]
    for s0 in range(0, 7, 2):
        cs = list(range(s0, min(s0 + 2, 7)))
        a(f"s_waitcnt vmcnt({9 + 6 - cs[-1]})")
        for c in cs:
            for e in range(4):
                a(f"v_lshlrev_b32 v{GZ + 8 * c + 2 * e}, 16, v{V_H1 + 4 * c + e}")
                a(f"v_and_b32 v{GZ + 8 * c + 2 * e + 1}, 0xffff0000, v{V_H1 + 4 * c + e}")
        a(gelu_pairs([GZ + 8 * c + 2 * e for c in cs for e in range(4)], tmps, VK))
    prof.stamp(a, 7)
    spin(a, "L_t1_f", f"buffer_load_dword v{V_FX}, v{V_T + 9}, {sr(S_WS, 4)}, 0 offen sc1", V_FX, ("all_nonzero",), f"s{S_CNT}", f"s{S_TMP}")
    prof.stamp(a, 8)
    for st in range(NSTG):
        a(f"s_mov_b32 s{S_FILL}, {st * STG}\ns_mov_b32 s{S_KA}, {st * 128}\ns_mov_b32 s{S_KB}, {st * 2048}")
        if st >= 2:
            a(dma_a())
        a(flat(dma_b()))
    a(f"s_mov_b32 s{S_FILL}, 0\ns_mov_b32 s{S_KA}, {NSTG * 128}\ns_mov_b32 s{S_KB}, {NSTG * 2048}")
    for i in range(112):
        a(f"v_mov_b32 v{ACC + i}, 0")
    a(f"s_mov_b32 s{S_J}, 0\ns_mov_b32 s{S_RD}, {STG}")
    a("s_waitcnt vmcnt(28)\ns_barrier")
    prof.stamp(a, 9)
    a(reads(SET[0]))
    for v in (V_LO, V_HI, V_ZB):
        a(f"v_add_u32 v{v}, {STG}, v{v}")


def step(a, j, loop=False):
    T = S_T
    u = j & 1
    dma = loop or j <= 26
    vm = {28: 17, 29: 9, 30: 0}.get(j, 24) if not loop else 24
    if not loop and j == 31:
        a("s_waitcnt lgkmcnt(0)\ns_barrier")
    else:
        a(f"s_waitcnt vmcnt({vm}) lgkmcnt(0)\ns_barrier")
    if not loop and j == 30:
        check(a, V_FX, ("all_nonzero",), f"s{S_TMP}")
        a("s_cbranch_scc1 L_p2_f_out")
        spin(a, "L_p2_f", f"buffer_load_dword v{V_FX}, v{V_FA}, {sr(S_WS, 4)}, s{S_FRB} offen sc1", V_FX, ("all_nonzero",),
             f"s{S_CNT}", f"s{S_TMP}")
    m = mfmas(SET[u])
    sl = Slots(len(m), cap=2)
    lastd = last = 0
    if dma:
        lastd = sl.chain(dma_a() + dma_b(), 0, 2.3)[-1]
    if loop or j < 31:
        last = sl.chain(reads(SET[1 - u]), 0, 1)[-1]
    book = []
    if loop or j < 30:
        book += [f"s_add_u32 s{T}, s{S_RD}, {STG}", [f"s_cmp_eq_u32 s{T}, {NSTG * STG}", f"s_cselect_b32 s{T}, 0, s{T}"],
                 f"s_sub_u32 s{S_D}, s{T}, s{S_RD}"]
        book += [f"v_add_u32 v{v}, s{S_D}, v{v}" for v in (V_LO, V_HI, V_ZB)]
    sl.chain(book, last - 2, 1)
    book2 = []
    if dma:
        book2 += [f"s_mov_b32 s{S_FILL}, s{S_RD}", f"s_add_u32 s{S_KA}, s{S_KA}, 128", f"s_add_u32 s{S_KB}, s{S_KB}, 2048"]
    if loop or j < 30:
        book2 += [f"s_mov_b32 s{S_RD}, s{T}"]
    if loop and u == 1:
        book2 += [f"s_add_u32 s{S_J}, s{S_J}, 1"]
    extra = []
    if not loop:
        if j == 27:
            extra = [f"buffer_load_dword v{V_FX}, v{V_FA}, {sr(S_WS, 4)}, s{S_FRB} offen sc1"]
        elif j == 28:
            extra = phase3.setup_items(0)
        elif j == 29:
            extra = phase3.setup_items(1)
        elif j == 30:
            extra = phase3.first_loads()
    start = max(lastd, last) + 1
    sl.chain(book2, start, 0.5, strict=False)
    if extra:
        sl.chain(extra, 0, 27.0 / len(extra), strict=False)
    a(sl.emit(m))


def mainloop(a, prof):
    a.label("L_p2_loop")
    step(a, 0, loop=True)
    step(a, 1, loop=True)
    a(f"s_cmp_lt_u32 s{S_J}, 13\ns_cbranch_scc1 L_p2_loop")
    for j in range(26, 32):
        step(a, j)
    prof.stamp(a, 10)


def epilogue(a, prof):
    T = S_T
    VA = V_T + 10
    a(f"s_mul_i32 s{T}, s{S_WAVE}, 14336\nv_add_u32 v{V_T + 2}, s{T}, v{VA}")
    a(f"s_xor_b32 s{T}, s{S_WAVE}, 2\ns_mul_i32 s{T}, s{T}, 14336\nv_add_u32 v{V_T + 3}, s{T}, v{VA}")
    for k in range(14):
        a(f"ds_write_b128 v{V_T + 2}, {vr(acc(2, 0) + 4 * k, 4)} offset:{k * 1024}")
    BS = V_T + 6
    a(f"v_lshlrev_b32 v{BS}, 16, v{V_BSP}\nv_and_b32 v{BS + 2}, 0xffff0000, v{V_BSP}")
    for par in range(2):
        for k in range(14):
            p = acc(par, 0) + 2 * k
            a(f"v_pk_add_f32 {vr(p, 2)}, {vr(p, 2)}, {vr(BS + 2 * par, 2)} op_sel_hi:[1,0]")
    a(f"s_mul_i32 s{T}, s{S_TG}, 88\ns_add_u32 s{T}, s{T}, 32\ns_mul_i32 s{T + 1}, s{S_FJ}, 7\ns_and_b32 s{T + 2}, s{S_FJ}, 1")
    a(f"s_add_u32 s{T + 3}, s{T + 1}, s{T + 2}\ns_lshr_b32 s{T + 3}, s{T + 3}, 1\ns_add_u32 s{T + 3}, s{T + 3}, s{T}\ns_lshl_b32 s{T + 3}, s{T + 3}, 11")
    a(f"s_cmp_eq_u32 s{T + 2}, 0\ns_cselect_b32 s{T + 4}, 6, 0\ns_add_u32 s{T + 4}, s{T + 4}, s{T + 1}\ns_lshr_b32 s{T + 4}, s{T + 4}, 1")
    a(f"s_add_u32 s{T + 4}, s{T + 4}, s{T}\ns_lshl_b32 s{T + 4}, s{T + 4}, 11\ns_lshl_b32 s{T + 2}, s{T + 2}, 3\ns_add_u32 s{T + 4}, s{T + 4}, s{T + 2}")
    if WS_ACT:
        a(f"s_add_u32 s{T + 3}, s{T + 3}, {WS_ACT:#x}\ns_add_u32 s{T + 4}, s{T + 4}, {WS_ACT:#x}")
    a("s_waitcnt lgkmcnt(0)\ns_barrier")
    for k in range(14):
        a(f"ds_read_b128 {vr(acc(2, 0) + 4 * k, 4)}, v{V_T + 3} offset:{k * 1024}")
    prof.stamp(a, 11)

    def finish(par, c):
        for e in range(2):
            p = acc(par, c) + 2 * e
            a(f"v_pk_add_f32 {vr(p, 2)}, {vr(p, 2)}, {vr(acc(2 + par, c) + 2 * e, 2)}")
        for e in range(2):
            p = acc(par, c) + 2 * e
            a(f"v_pk_mul_f32 {vr(p, 2)}, {vr(p, 2)}, {vr(GZ + 8 * c + 4 * par + 2 * e, 2)}")

    k = 0
    for par in range(2):
        a(f"s_waitcnt lgkmcnt({7 - 7 * par})")
        for c in range(7):
            finish(par, c)
        for pp in range(3):
            t = 232 + 4 * (k % 4)
            k += 1
            for cc in range(2):
                for e in range(2):
                    p = acc(par, 2 * pp + cc) + 2 * e
                    a(f"v_cvt_pk_bf16_f32 v{t + 2 * cc + e}, v{p}, v{p + 1}")
            o = (pp & 1) * 2048 + par * 1024
            off = f" offset:{o}" if o else ""
            if pp == 2:
                a(f"s_add_u32 s{T + 5}, s{T + 3}, 4096")
            a(f"buffer_store_dwordx4 {vr(t, 4)}, v{VA}, {sr(S_WS, 4)}, s{T + 5 if pp == 2 else T + 3} offen{off} {SF}")
        t = 248 + 2 * par
        for e in range(2):
            p = acc(par, 6) + 2 * e
            a(f"v_cvt_pk_bf16_f32 v{t + e}, v{p}, v{p + 1}")
        off = f" offset:{par * 1024}" if par else ""
        a(f"buffer_store_dwordx2 {vr(t, 2)}, v{VA}, {sr(S_WS, 4)}, s{T + 4} offen{off} {SF}")
    prof.stamp(a, 12)


def phase2(a, prof):
    transition(a, prof)
    mainloop(a, prof)
    epilogue(a, prof)
```

```python
from common import *
from phase1 import (S_WAVE, S_T, S_WS, S_CNT, S_TMP, SF, P_WO, P_WOUT, P_OUT, P_WS, flat, set_flag)

S_W, S_ACT, S_OUT = 4, 8, 12
S_TI, S_DJ = 25, 26
S_KW, S_KA, S_IT, S_MW = 28, 29, 36, 32
S_TG = 55
S_GOFF = 53
LDS_W = 61440
ACC_A, ACC_B = 0, 32
A_RING = 128
V_WD, V_AD, V_RA = 112, 114, 116
V_L = 123
V_FA, V_FX = 124, 125
V_G = 126
V_T = 160
SET = [0, 32]


def mfmas(accb, s, u, kk):
    return [mfma(vr(accb + (par * 4 + c) * 4, 4), ar(s + (kk * 4 + c) * 4, 4), ar(A_RING + u * 16 + (kk * 2 + par) * 4, 4))
            for c in range(4) for par in range(2)]


def reads(s, slot):
    return [f"ds_read_b64_tr_b16 {ar(s + (kk * 4 + c) * 4 + 2 * h, 2)}, v{V_RA + c} offset:{slot * 8192 + kk * 4096 + h * 2048}"
            for kk in range(2) for c in range(4) for h in range(2)]


def dma_w(slot):
    return [f"s_add_u32 m0, s{S_MW}, {slot * 8192}",
            f"buffer_load_dwordx4 v{V_WD}, {sr(S_W, 4)}, s{S_KW} offen lds",
            f"buffer_load_dwordx4 v{V_WD + 1}, {sr(S_W, 4)}, s{S_KW} offen offset:1024 lds"]


def act_loads(u, kk):
    o = []
    for par in range(2):
        ofs = kk * 2048 + par * 1024
        off = f" offset:{ofs}" if ofs else ""
        o.append(f"buffer_load_dwordx4 {ar(A_RING + u * 16 + (kk * 2 + par) * 4, 4)}, v{V_AD}, {sr(S_ACT, 4)}, s{S_KA} offen{off} {SF}")
    return o


def srd_items(dst, ptr, size, off=0):
    a = Asm()
    srd_from(a, dst, ptr, size, off)
    return [a.items[:2]] + a.items[2:]


def setup_items(part):
    T = S_T + 2
    L = V_L
    t0, t1, t2 = V_T, V_T + 1, V_T + 2
    if part == 0:
        o = [f"s_lshl_b32 s{S_TG}, s{S_TI}, 2", f"s_add_u32 s{S_TG}, s{S_TG}, s{S_WAVE}"]
        o += srd_items(S_W, P_WO, 1024 * 2048) + srd_items(S_ACT, P_WS, SZ_ACT, WS_ACT)
        o += [f"v_lshrrev_b32 v{t0}, 3, v{L}", f"v_and_b32 v{t1}, 7, v{L}", f"v_and_b32 v{t2}, 6, v{t0}", f"v_xor_b32 v{t1}, v{t1}, v{t2}",
              f"v_lshlrev_b32 v{t1}, 4, v{t1}", f"v_lshl_add_u32 v{t1}, v{t0}, 11, v{t1}",
              f"s_lshl_b32 s{T}, s{S_WAVE}, 15", f"s_lshl_b32 s{T + 1}, s{S_DJ}, 7", f"s_add_u32 s{T}, s{T}, s{T + 1}",
              f"v_add_u32 v{V_WD}, s{T}, v{t1}", f"v_add_u32 v{V_WD + 1}, {8 * 2048 - 1024}, v{V_WD}",
              f"s_mul_i32 s{T}, s{S_TG}, {88 * 2048}", f"v_lshl_add_u32 v{V_AD}, v{L}, 4, s{T}",
              f"s_lshl_b32 s{S_MW}, s{S_WAVE}, 11", f"s_add_u32 s{S_MW}, s{S_MW}, {LDS_W}", f"s_mov_b32 s{S_KW}, 0", f"s_mov_b32 s{S_KA}, 0"]
        return o
    o = srd_items(S_OUT, P_OUT, 2048 * 2048)
    o += [f"v_lshrrev_b32 v{t0}, 4, v{L}", f"v_bfe_u32 v{t1}, v{L}, 2, 2", f"v_lshl_add_u32 v{t0}, v{t0}, 2, v{t1}",
          f"v_bfe_u32 v{t1}, v{t0}, 1, 2", f"v_lshlrev_b32 v{t0}, 7, v{t0}", f"v_and_b32 v{t2}, 3, v{L}",
          f"v_lshl_add_u32 v{t0}, v{t2}, 3, v{t0}", f"v_add_u32 v{t0}, {LDS_W}, v{t0}"]
    for cb in range(4):
        o += [f"v_xor_b32 v{t2}, {cb}, v{t1}", f"v_lshl_add_u32 v{V_RA + cb}, v{t2}, 5, v{t0}"]
    o += [f"s_lshl_b32 s{S_GOFF}, s{S_TI}, 7"]
    return o


def first_loads():
    o = []
    for u in range(4):
        o += dma_w(u) + act_loads(u, 0) + act_loads(u, 1)
        o += [f"s_add_u32 s{S_KW}, s{S_KW}, {64 * 2048}", f"s_add_u32 s{S_KA}, s{S_KA}, 4096"]
    return o


def step(a, accb, u, vm=16, loads=True, rd=True, barrier=True, after_barrier=None, extra=()):
    a(f"s_waitcnt vmcnt({vm}) lgkmcnt(0)")
    if barrier:
        a("s_barrier")
    if after_barrier:
        after_barrier()
    s = SET[u & 1]
    m = mfmas(accb, s, u, 0) + mfmas(accb, s, u, 1)
    sl = Slots(16, cap=2)
    if loads:
        sl.chain(dma_w(u), 0, 1)
    if rd:
        sl.chain(reads(SET[1 - (u & 1)], (u + 1) & 3), 0, 0.75, strict=False)
    if loads:
        sl.chain([f"s_add_u32 s{S_KW}, s{S_KW}, {64 * 2048}"], 4)
        sl.chain(act_loads(u, 0), 8, 2)
    if extra:
        sl.chain(list(extra), 4, 12.0 / len(extra), strict=False)
    a(sl.emit(m))
    if loads:
        a(act_loads(u, 1))
        a(f"s_add_u32 s{S_KA}, s{S_KA}, 4096")


def phase3(a, prof):
    T = S_T
    L = V_L
    t0, t1, t2 = V_T, V_T + 1, V_T + 2
    n, g = V_T + 5, V_T + 6
    a(f"v_and_b32 v{V_FA}, 15, v{L}\nv_lshlrev_b32 v{V_FA}, 2, v{V_FA}\nv_add_u32 v{V_FA}, {FL_G:#x}, v{V_FA}")
    for i in range(64):
        a(f"v_mov_b32 v{i}, 0")
    a(f"s_lshl_b32 s{T + 8}, s{S_DJ}, 2\ns_add_u32 s{T + 8}, s{T + 8}, s{S_GOFF}")
    a("s_waitcnt vmcnt(8)\ns_barrier")
    a(reads(SET[0], 0))
    gload = f"buffer_load_dword v{V_FX}, v{V_FA}, {sr(S_WS, 4)}, s{S_GOFF} offen sc1"

    def publish():
        set_flag(a, "L_p3_gflag", FL_G, f"s{T + 8}", 252)

    def wait_u():
        check(a, V_FX, ("all_nonzero",), f"s{S_TMP}")
        a("s_cbranch_scc1 L_p3_g_out")
        spin(a, "L_p3_g", gload, V_FX, ("all_nonzero",), f"s{S_CNT}", f"s{S_TMP}")
        srd_from(a, S_W, P_WOUT, 1792 * 2048)
        a(f"s_mov_b32 s{S_KW}, 0")
        prof.stamp(a, 13)

    for j in range(16):
        step(a, ACC_A, j & 3, after_barrier={3: publish, 12: wait_u}.get(j), extra=[gload] if j == 8 else ())
    a(f"s_mov_b32 s{S_IT}, 0")
    a.label("L_p3_loop")
    for u in range(4):
        step(a, ACC_B, u)
    a(f"s_add_u32 s{S_IT}, s{S_IT}, 1\ns_cmp_lt_u32 s{S_IT}, 6\ns_cbranch_scc1 L_p3_loop")
    ex = [f"v_and_b32 v{n}, 15, v{L}", f"v_lshlrev_b32 v{t0}, 3, v{n}", f"s_lshl_b32 s{T}, s{S_TG}, 7", f"s_add_u32 s{T}, s{T}, {WS_GATE:#x}",
          f"buffer_load_dwordx2 {vr(V_G, 2)}, v{t0}, {sr(S_WS, 4)}, s{T} offen {SF}"]
    step(a, ACC_B, 0, loads=False, extra=ex)
    ex = [f"v_lshrrev_b32 v{g}, 4, v{L}", f"v_lshlrev_b32 v{t0}, 12, v{n}", f"v_and_b32 v{t1}, 1, v{g}", f"v_lshl_add_u32 v{t0}, v{t1}, 5, v{t0}",
          f"v_lshrrev_b32 v{t1}, 1, v{g}", f"v_lshl_add_u32 v{t0}, v{t1}, 4, v{t0}",
          f"s_lshl_b32 s{T}, s{S_TG}, 16", f"s_lshl_b32 s{T + 1}, s{S_DJ}, 7", f"s_add_u32 s{T}, s{T}, s{T + 1}"]
    step(a, ACC_B, 1, vm=10, loads=False, extra=ex)
    ex = [f"v_pk_add_f32 {vr(ACC_A + 2 * k, 2)}, {vr(ACC_A + 2 * k, 2)}, {vr(V_G, 2)} op_sel:[0,{k >> 3}] op_sel_hi:[1,{k >> 3}]".replace("v_pk_add", "v_pk_mul")
          for k in range(16)]
    step(a, ACC_B, 2, vm=4, loads=False)
    step(a, ACC_B, 3, vm=0, loads=False, rd=False, barrier=False, extra=ex + [f"v_sub_f32 v{V_G}, 1.0, v{V_G}", f"v_sub_f32 v{V_G + 1}, 1.0, v{V_G + 1}"])
    prof.stamp(a, 14)
    for k in range(16):
        par = k >> 3
        a(f"v_pk_fma_f32 {vr(ACC_A + 2 * k, 2)}, {vr(ACC_B + 2 * k, 2)}, {vr(V_G, 2)}, {vr(ACC_A + 2 * k, 2)} "
          f"op_sel:[0,{par},0] op_sel_hi:[1,{par},1]")
    for par in range(2):
        for pr in range(2):
            t = 64 + (par * 2 + pr) * 4
            for cc in range(2):
                for e in range(2):
                    p = ACC_A + (par * 4 + pr * 2 + cc) * 4 + 2 * e
                    a(f"v_cvt_pk_bf16_f32 v{t + 2 * cc + e}, v{p}, v{p + 1}")
            a(f"v_permlane16_swap_b32 v{t}, v{t + 2}\nv_permlane16_swap_b32 v{t + 1}, v{t + 3}")
            o = par * 2048 + pr * 64
            off = f" offset:{o}" if o else ""
            a(f"buffer_store_dwordx4 {vr(t, 4)}, v{t0}, {sr(S_OUT, 4)}, s{T} offen{off}")
```

```python
import sys, os
sys.path.insert(0, os.path.dirname(os.path.abspath(__file__)))
from common import *
import phase1, phase2, phase3

HEADER = """; gated_mix: x -> [local dilated attention | gMLP spatial gating] -> gated mix.  Generated by gen/gen.py.
; @launch grid=(256,1,1) block=(256,1,1) lds=163840
.amdgcn_target "amdgcn-amd-amdhsa--gfx950"
"""


def build(prof=False):
    a = Asm()
    name = NAME + "_kernel"
    kernel_head(a, name)
    p = Prof(prof)
    a("s_cmp_ge_u32 s2, 256\ns_cbranch_scc0 L_start\ns_endpgm")
    a.label("L_start")
    phase1.load_kernargs(a)
    p.init(a)
    p.stamp(a, 0)
    phase1.phase1(a, p)
    phase2.phase2(a, p)
    phase3.phase3(a, p)
    if prof:
        a("s_waitcnt vmcnt(0)")
        p.stamp(a, 15)
        p.flush(a, phase1.S_WS, "s2", f"s{phase1.S_WAVE}", phase1.S_DBG)
    a("s_endpgm")
    txt = a.finish()
    return HEADER + txt + kernel_desc(name), a


if __name__ == "__main__":
    out = sys.argv[1] if len(sys.argv) > 1 else "cdna_kernels/" + NAME + ".s"
    prof = "--prof" in sys.argv
    txt, a = build(prof)
    open(out, "w").write(txt)
    print("wrote", out, len(txt), "bytes; nops inserted:", a.n_nops)
```

```python
from asmlib import *

NAME = "gated_mix__sliding_local_dilated__mixer_gmlp__prompt"

KA_X, KA_WQKV, KA_WO, KA_BX, KA_WIN, KA_WSP, KA_BSP, KA_WOUT, KA_GATE, KA_OUT, KA_DBG, KA_WS = [8 * i for i in range(12)]

WS_ACT = 0x0000000
WS_H1 = 0x0C00000
WS_Z2N = 0x1400000
WS_GATE = 0x1C00000
WS_STATS = 0x1C10000
WS_FLAG = 0x1C60000
WS_PROF = 0x1D00000
SZ_ACT = 64 * 88 * 2048
SZ_H1 = 64 * 112 * 1024
SZ_Z2N = 112 * 65536
SZ_GATE = 2048 * 4
SZ_STATS = 16 * 16 * 1024
FL_F, FL_H, FL_G = WS_FLAG, WS_FLAG + 1024, WS_FLAG + 2048

import os
KNOB = set(os.environ.get('KNOB', '').split(','))

SRD3 = "0x20000"


def srd_from(a, dst, ptr, size, off=0):
    if off:
        a(f"s_add_u32 s{dst}, s{ptr}, {off:#x}")
        a(f"s_addc_u32 s{dst + 1}, s{ptr + 1}, 0")
    else:
        a(f"s_mov_b32 s{dst}, s{ptr}")
        a(f"s_mov_b32 s{dst + 1}, s{ptr + 1}")
    if isinstance(size, str):
        a(f"s_mov_b32 s{dst + 2}, {size}")
    else:
        a(f"s_mov_b32 s{dst + 2}, {size:#x}")
    a(f"s_mov_b32 s{dst + 3}, {SRD3}")


def kernel_head(a, name):
    a.raw(".text")
    a.raw(f".globl {name}")
    a.raw(".p2align 8")
    a.raw(f".type {name},@function")
    a.raw(f"{name}:")


def kernel_desc(name, nfv=512, acc=256):
    return f""".section .rodata,"a"
.p2align 6
.amdhsa_kernel {name}
  .amdhsa_next_free_vgpr {nfv}
  .amdhsa_next_free_sgpr 102
  .amdhsa_accum_offset {acc}
  .amdhsa_group_segment_fixed_size 0
  .amdhsa_kernarg_size 96
  .amdhsa_user_sgpr_count 2
  .amdhsa_user_sgpr_kernarg_segment_ptr 1
  .amdhsa_system_sgpr_workgroup_id_x 1
  .amdhsa_float_denorm_mode_32 3
.end_amdhsa_kernel
"""


class Slots:
    def __init__(self, n, cap=1):
        self.n = n
        self.cap = cap
        self.gaps = [[] for _ in range(n)]

    def put(self, item, want):
        p = max(0, min(want, self.n - 1))
        cap = self.cap
        while True:
            for q in range(p, self.n):
                if len(self.gaps[q]) < cap:
                    self.gaps[q].append(item)
                    return q
            cap += 1

    def chain(self, items, start, stride=1, strict=True):
        last = -1
        pos = float(start)
        out = []
        for it in items:
            want = max(int(pos), last + (1 if strict else 0))
            if want >= self.n:
                self.gaps[self.n - 1].append(it)
                last = self.n - 1
            else:
                last = self.put(it, want)
            out.append(last)
            pos += stride
        return out

    def emit(self, main):
        out = []
        for m, g in zip(main, self.gaps):
            out.append(m)
            for f in g:
                if isinstance(f, (list, tuple)):
                    out.extend(f)
                else:
                    out.append(f)
        return out


GELU_C0 = -2.0 * 0.7978845608028654 * 1.4426950408889634
GELU_C1 = GELU_C0 * 0.044715


def gelu_pairs(xs, ts, vk):
    o = []
    for x, t in zip(xs, ts):
        o.append(f"v_pk_mul_f32 {vr(t, 2)}, {vr(x, 2)}, {vr(x, 2)}")
    for x, t in zip(xs, ts):
        o.append(f"v_pk_fma_f32 {vr(t, 2)}, {vr(t, 2)}, {vr(vk, 2)}, {vr(vk, 2)} op_sel:[0,0,1] op_sel_hi:[1,0,1]")
    for x, t in zip(xs, ts):
        o.append(f"v_pk_mul_f32 {vr(t, 2)}, {vr(t, 2)}, {vr(x, 2)}")
    for x, t in zip(xs, ts):
        o.append(f"v_exp_f32 v{t}, v{t}")
        o.append(f"v_exp_f32 v{t + 1}, v{t + 1}")
    for x, t in zip(xs, ts):
        o.append(f"v_pk_add_f32 {vr(t, 2)}, {vr(t, 2)}, 1.0 op_sel_hi:[1,0]")
    for x, t in zip(xs, ts):
        o.append(f"v_rcp_f32 v{t}, v{t}")
        o.append(f"v_rcp_f32 v{t + 1}, v{t + 1}")
    for x, t in zip(xs, ts):
        o.append(f"v_pk_mul_f32 {vr(x, 2)}, {vr(x, 2)}, {vr(t, 2)}")
    return o


def mfma(d, a_, b_, c=None):
    c = d if c is None else c
    return f"v_mfma_f32_16x16x32_bf16 {d}, {a_}, {b_}, {c}"


class Prof:
    VR, VC = 254, 255

    def __init__(self, on):
        self.on = on
        self.n = 0

    def stamp(self, a, idx=None):
        if idx is not None:
            self.n = idx
        if self.on:
            a("s_memrealtime s[92:93]\ns_memtime s[94:95]\ns_waitcnt lgkmcnt(0)")
            a(f"v_writelane_b32 v{self.VR}, s92, {self.n}\nv_writelane_b32 v{self.VC}, s94, {self.n}")
        self.n += 1

    def init(self, a):
        if self.on:
            a(f"v_mov_b32 v{self.VR}, 0\nv_mov_b32 v{self.VC}, 0")

    def flush(self, a, ws_srd, s_wg, s_wave, dbg_srd=None):
        if not self.on:
            return
        mode = [k for k in KNOB if k.startswith("dbg")]
        if mode:
            sel = mode[0][3:]
            a(f"v_readlane_b32 s92, v{self.VR}, 0\ns_not_b32 s92, s92")
            if sel == "min":
                a(f"v_cmp_eq_u32 vcc, 0, v{self.VR}\nv_not_b32 v{self.VR}, v{self.VR}\nv_cndmask_b32 v{self.VR}, v{self.VR}, 0, vcc")
            elif sel != "max":
                a(f"s_cmp_eq_u32 {s_wg}, {int(sel)}\ns_cbranch_scc0 L_dbg_skip")
            a(f"v_writelane_b32 v{self.VR}, s92, 11")
            a("v_mbcnt_lo_u32_b32 v0, -1, 0\nv_mbcnt_hi_u32_b32 v0, -1, v0\nv_lshlrev_b32 v0, 2, v0")
            a(f"s_mov_b64 exec, 0xfffe\nbuffer_atomic_umax v{self.VR}, v0, {sr(dbg_srd, 4)}, 0 offen sc1\ns_mov_b64 exec, -1")
            a.label("L_dbg_skip")
            return
        a(f"s_lshl_b32 s92, {s_wg}, 2\ns_add_u32 s92, s92, {s_wave}\ns_lshl_b32 s92, s92, 8\ns_add_u32 s92, s92, {WS_PROF:#x}")
        a("v_mbcnt_lo_u32_b32 v0, -1, 0\nv_mbcnt_hi_u32_b32 v0, -1, v0\nv_lshlrev_b32 v0, 2, v0")
        a(f"s_mov_b32 exec_hi, 0\nbuffer_store_dword v{self.VR}, v0, {sr(ws_srd, 4)}, s92 offen")
        a(f"buffer_store_dword v{self.VC}, v0, {sr(ws_srd, 4)}, s92 offen offset:128\ns_mov_b32 exec_hi, -1")


SPIN_MAX = "0x40000"


def spin(a, label, load, vdat, cond, s_cnt, s_tmp):
    a(f"s_mov_b32 {s_cnt}, 0")
    a.label(label)
    a(load)
    a("s_waitcnt vmcnt(0)")
    check(a, vdat, cond, s_tmp)
    a(f"s_cbranch_scc1 {label}_out")
    a(f"s_add_u32 {s_cnt}, {s_cnt}, 1\ns_cmp_lt_u32 {s_cnt}, {SPIN_MAX}\ns_cbranch_scc1 {label}")
    a.label(label + "_out")


def check(a, vdat, cond, s_tmp):
    if cond[0] == "all_nonzero":
        a(f"v_cmp_eq_u32 vcc, 0, v{vdat}\ns_cmp_eq_u64 vcc, 0")
    elif cond[0] == "ge":
        a(f"v_readfirstlane_b32 {s_tmp}, v{vdat}\ns_cmp_ge_u32 {s_tmp}, {cond[1]}")
    else:
        a(cond[1])
        a(f"v_cmp_eq_u32 vcc, -1, v{vdat}\ns_cmp_eq_u64 vcc, 0")
```

```python
from common import *

XS = 34816
WS0 = 3 * XS
WSZ = 28672
GATE_LDS = WS0 + 2 * WSZ

S_X, S_W, S_E, S_WS, S_DBG = 4, 8, 12, 16, 20
S_WAVE, S_RB, S_PAR, S_T0 = 24, 25, 26, 27
S_KX, S_KW, S_KE, S_FOFF = 28, 29, 30, 31
S_XF, S_WF, S_EOFF, S_HOFF = 32, 33, 34, 35
S_J, S_D0, S_D1, S_D2, S_DW = 36, 37, 38, 39, 40
S_T = 41
S_HALF, S_CH = 50, 51
S_PTR = 56
P_X, P_WQKV, P_WO, P_BX, P_WIN, P_WSP, P_BSP, P_WOUT, P_GATE, P_OUT = [S_PTR + 2 * i for i in range(10)]
P_DBG, P_WS = 76, 78
S_PF0, S_PF1, S_PF2 = 80, 84, 88
S_CNT, S_TMP = 96, 97
S_ROT, S_Q, S_GK = 52, 53, 54
V_C0 = 251
SF = "sc1"

ACC = 16
V_XD, V_HD, V_WD, V_ED = 224, 232, 233, 239
V_XA0, V_XA1, V_HA0, V_HA1, V_WA, V_EA = 240, 241, 242, 243, 244, 250
SET = [0, 64]
F_X, F_H, F_W, F_E = 0, 32, 36, 60
A_EX = 128


def load_kernargs(a):
    a(f"s_load_dwordx16 s[{S_PTR}:{S_PTR + 15}], s[0:1], 0")
    a(f"s_load_dwordx4 s[{S_PTR + 16}:{S_PTR + 19}], s[0:1], 64")
    a(f"s_load_dwordx4 s[{P_DBG}:{P_DBG + 3}], s[0:1], 80")


def mfma_list(typ, s, zero=False):
    def mfma(d, x, y):
        return f"v_mfma_f32_16x16x32_bf16 {d}, {x}, {y}, {'0' if zero else d}"
    fx = lambda tb: ar(s + F_X + 4 * tb, 4)
    fh = ar(s + F_H, 4)
    fw = lambda b: ar(s + F_W + 4 * b, 4)
    fe = ar(s + F_E, 4)
    o = []
    for tb in range(8):
        if typ == "A":
            for c in range(2):
                o.append(mfma(vr(ACC + (tb * 2 + c) * 4, 4), fw(c), fx(tb)))
            for c in range(2):
                o.append(mfma(vr(ACC + 64 + (tb * 2 + c) * 4, 4), fw(2 + c), fx(tb)))
            for c in range(2):
                o.append(mfma(vr(ACC + 136 + (tb * 2 + c) * 4, 4), fx(tb), fw(4 + c)))
            o.append(mfma(ar(A_EX + tb * 4, 4), fe, fx(tb)))
        elif typ == "Z":
            for c in range(4):
                o.append(mfma(vr(ACC + (tb * 4 + c) * 4, 4), fw(c), fx(tb)))
            for c in range(2):
                o.append(mfma(vr(ACC + 128 + (tb * 2 + c) * 4, 4), fw(4 + c), fx(tb)))
        else:
            for c in range(6):
                o.append(mfma(vr(ACC + (tb * 6 + c) * 4, 4), fw(c), fx(tb)))
            o.append(mfma(ar(A_EX + tb * 4, 4), fe, fx(tb)))
    if typ == "A":
        for c in range(2):
            o.append(mfma(vr(ACC + 64 + (16 + c) * 4, 4), fw(2 + c), fh))
        for c in range(2):
            o.append(mfma(vr(ACC + 136 + (16 + c) * 4, 4), fh, fw(4 + c)))
    return o


def frag_reads(typ, kk):
    s = SET[kk]
    xa = V_XA1 if kk else V_XA0
    ha = V_HA1 if kk else V_HA0
    xs = [f"ds_read_b128 {ar(s + F_X + 4 * tb, 4)}, v{xa} offset:{tb * 2048}" for tb in range(8)]
    ws = []
    for b in range(6):
        for h in range(2):
            ws.append(f"ds_read_b64_tr_b16 {ar(s + F_W + 4 * b + 2 * h, 2)}, v{V_WA + b} offset:{kk * 4096 + h * 512}")
    if typ == "A":
        for h in range(2):
            ws.append(f"ds_read_b64_tr_b16 {ar(s + F_E + 2 * h, 2)}, v{V_EA} offset:{kk * 2048 + h * 256}")
        xs.append(f"ds_read_b128 {ar(s + F_H, 4)}, v{ha}")
    elif typ == "Y":
        ws.append(f"ds_read_b128 {ar(s + F_E, 4)}, v{V_EA} offset:{kk * 64}")
    return [xs[0]] + ws + xs[1:]


def dma_x(typ):
    o = []
    for grp in range(2):
        o.append(f"s_add_u32 m0, s{S_XF}, {grp * 4096}" if grp else f"s_mov_b32 m0, s{S_XF}")
        for q in range(4):
            off = f" offset:{q * 1024}" if q else ""
            o.append(f"buffer_load_dwordx4 v{V_XD + grp * 4 + q}, {sr(S_X, 4)}, s{S_KX} offen{off} lds")
    if typ == "A":
        o.append(f"s_add_u32 m0, s{S_XF}, s{S_HOFF}")
        o.append(["s_mov_b32 exec_hi, 0",
                  f"buffer_load_dwordx4 v{V_HD}, {sr(S_X, 4)}, s{S_KX} offen lds",
                  "s_mov_b32 exec_hi, -1"])
    return o


def dma_w(typ):
    o = [f"s_mov_b32 m0, s{S_WF}"]
    for q in range(4):
        off = f" offset:{q * 1024}" if q else ""
        o.append(f"buffer_load_dwordx4 v{V_WD + q}, {sr(S_W, 4)}, s{S_KW} offen{off} lds")
    o.append(f"s_add_u32 m0, s{S_WF}, 4096")
    for q in range(2):
        off = f" offset:{q * 1024}" if q else ""
        o.append(f"buffer_load_dwordx4 v{V_WD + 4 + q}, {sr(S_W, 4)}, s{S_KW} offen{off} lds")
    if typ == "A":
        o.append(f"s_add_u32 m0, s{S_WF}, s{S_EOFF}")
        o.append(f"buffer_load_dwordx4 v{V_ED}, {sr(S_E, 4)}, s{S_KE} offen lds")
    return o


def kstep_items(typ):
    stride = 6144 if typ == "A" else 7168
    T = S_T + 1
    o = [f"s_add_u32 s{S_Q}, s{S_Q}, 1", f"s_add_u32 s{T}, s{S_Q}, s{S_ROT}", f"s_and_b32 s{T}, s{T}, 3", f"s_and_b32 s{S_GK}, s{S_Q}, -4",
         f"s_or_b32 s{S_GK}, s{S_GK}, s{T}", f"s_lshl_b32 s{S_KX}, s{S_GK}, 7", f"s_mul_i32 s{S_KW}, s{S_GK}, {64 * stride}"]
    if typ == "A":
        o.append(f"s_mul_i32 s{S_KE}, s{S_GK}, {64 * 7168}")
    return o


def flat(items):
    o = []
    for it in items:
        if isinstance(it, (list, tuple)):
            o.extend(it)
        else:
            o.append(it)
    return o


def setup(a, typ, tag):
    T = S_T
    t0, t1, t2, t3, t4, t5 = 200, 201, 202, 203, 204, 205
    stride = 6144 if typ == "A" else 7168
    a(f"v_lshrrev_b32 v{t0}, 3, v0")
    a(f"v_and_b32 v{t1}, 7, v0")
    a(f"v_lshrrev_b32 v{t2}, 1, v{t0}")
    a(f"v_xor_b32 v{t3}, v{t1}, v{t2}")
    a(f"v_xor_b32 v{t4}, 4, v{t3}")
    a(f"v_lshlrev_b32 v{t0}, 12, v{t0}")
    a(f"v_lshl_add_u32 v{t3}, v{t3}, 4, v{t0}")
    a(f"v_lshl_add_u32 v{t4}, v{t4}, 4, v{t0}")
    a(f"s_lshl_b32 s{T}, s{S_WAVE}, 6\ns_add_u32 s{T}, s{T}, s{S_T0}\ns_lshl_b32 s{T}, s{T}, 11")
    for i in range(8):
        tok = 32 * (i >> 2) + 16 * (i & 1) + ((i >> 1) & 1)
        a(f"s_add_u32 s{T + 1}, s{T}, {tok * 2048 - (i & 3) * 1024}")
        a(f"v_add_u32 v{V_XD + i}, s{T + 1}, v{t4 if i & 1 else t3}")
    srd_from(a, S_X, P_X, 2048 * 2048)
    if typ == "A":
        a(f"v_lshrrev_b32 v{t0}, 3, v0\nv_and_b32 v{t0}, 3, v{t0}")
        a(f"s_lshl_b32 s{T}, s{S_WAVE}, 2")
        a(f"v_add_u32 v{t0}, s{T}, v{t0}")
        a(f"v_and_b32 v{t2}, 7, v{t0}\nv_lshlrev_b32 v{t2}, 1, v{t2}")
        a(f"v_lshrrev_b32 v{t3}, 3, v{t0}\nv_add_u32 v{t2}, v{t2}, v{t3}")
        a(f"s_sub_u32 s{T}, s{S_T0}, 16\nv_add_u32 v{t2}, s{T}, v{t2}\nv_max_i32 v{t2}, 0, v{t2}")
        a(f"v_lshrrev_b32 v{t0}, 1, v{t0}\nv_xor_b32 v{t0}, v{t1}, v{t0}\nv_lshlrev_b32 v{t0}, 4, v{t0}")
        a(f"v_lshl_add_u32 v{V_HD}, v{t2}, 11, v{t0}")
        a(f"s_mul_i32 s{T}, s{S_WAVE}, {8192 - 512}\ns_sub_u32 s{S_HOFF}, 32768, s{T}")
    a(f"s_lshl_b32 s{S_XF}, s{S_WAVE}, 13\ns_mov_b32 s{S_Q}, -1")
    a(kstep_items(typ))
    if typ == "Y":
        a(f"s_mov_b32 s{S_KE}, s{S_KX}")
    a(flat(dma_x(typ)))
    if typ == "A":
        a(f"s_lshl_b32 s{T}, s{S_PAR}, 7\ns_movk_i32 s{T + 1}, 2048\ns_add_u32 s{T + 2}, s{T}, 4096")
        srd_from(a, S_W, P_WQKV, 1024 * 6144)
    elif typ == "Z":
        a(f"s_lshl_b32 s{T}, s{S_PAR}, 8\ns_add_u32 s{T}, s{T}, 3584\ns_movk_i32 s{T + 1}, 128")
        a(f"s_lshl_b32 s{T + 2}, s{S_PAR}, 7\ns_add_u32 s{T + 2}, s{T + 2}, 1024")
        srd_from(a, S_W, P_WIN, 1024 * 7168)
    else:
        a(f"s_mul_i32 s{T}, s{S_PAR}, 384\ns_add_u32 s{T}, s{T}, 2816\ns_movk_i32 s{T + 1}, 128\ns_add_u32 s{T + 2}, s{T}, 256")
        srd_from(a, S_W, P_WIN, 1024 * 7168)
    a(f"v_lshrrev_b32 v{t0}, 3, v0\nv_and_b32 v{t1}, 7, v0\nv_and_b32 v{t2}, 2, v{t0}\nv_xor_b32 v{t1}, v{t1}, v{t2}")
    a(f"v_mul_u32_u24 v{t0}, {stride}, v{t0}\nv_lshl_add_u32 v{t3}, v{t1}, 4, v{t0}\nv_xor_b32 v{t4}, 64, v{t3}")
    a(f"s_mul_i32 s{T + 3}, s{S_WAVE}, 6")
    for i in range(6):
        imm = (i if i < 4 else i - 4) * 1024
        a(f"s_add_u32 s{T + 4}, s{T + 3}, {i}\ns_lshr_b32 s{T + 5}, s{T + 4}, 3\ns_and_b32 s{T + 4}, s{T + 4}, 7")
        a(f"s_mul_i32 s{T + 6}, s{T + 5}, s{T + 1}\ns_add_u32 s{T + 6}, s{T + 6}, s{T}\ns_cmp_eq_u32 s{T + 5}, 2\ns_cselect_b32 s{T + 6}, s{T + 2}, s{T + 6}")
        a(f"s_mul_i32 s{T + 4}, s{T + 4}, {8 * stride}\ns_add_u32 s{T + 6}, s{T + 6}, s{T + 4}")
        if imm:
            a(f"s_sub_u32 s{T + 6}, s{T + 6}, {imm}")
        a(f"v_add_u32 v{V_WD + i}, s{T + 6}, v{t4 if i & 1 else t3}")
    if typ == "A":
        srd_from(a, S_E, P_WIN, 1024 * 7168)
        a(f"v_lshrrev_b32 v{t0}, 2, v0\ns_lshl_b32 s{T}, s{S_WAVE}, 4\nv_add_u32 v{t0}, s{T}, v{t0}")
        a(f"v_and_b32 v{t1}, 3, v0\nv_lshrrev_b32 v{t2}, 2, v{t0}\nv_and_b32 v{t2}, 2, v{t2}\nv_xor_b32 v{t1}, v{t1}, v{t2}")
        a(f"s_lshl_b32 s{T}, s{S_PAR}, 6\nv_lshl_add_u32 v{t1}, v{t1}, 4, s{T}")
        a(f"s_movk_i32 s{T}, 7168\nv_mad_u32_u24 v{V_ED}, v{t0}, s{T}, v{t1}")
        a(f"s_mul_i32 s{T}, s{S_WAVE}, {6144 - 1024}\ns_sub_u32 s{S_EOFF}, 24576, s{T}")
    a(f"s_mul_i32 s{S_WF}, s{S_WAVE}, 6144\ns_add_u32 s{S_WF}, s{S_WF}, {WS0}")
    a(flat(dma_w(typ)))
    if typ == "Y":
        srd_from(a, S_E, P_GATE, 2048)
        a(f"s_lshl_b32 s{T}, s{S_WAVE}, 9\ns_add_u32 m0, s{T}, {GATE_LDS}")
        a(f"v_lshl_add_u32 v{t0}, v0, 4, s{T}")
        a(f"s_mov_b32 exec_hi, 0\nbuffer_load_dwordx4 v{t0}, {sr(S_E, 4)}, 0 offen lds\ns_mov_b32 exec_hi, -1")
    a(f"s_add_u32 s{S_XF}, s{S_XF}, {XS}")
    a(kstep_items(typ))
    a(flat(dma_x(typ)))
    a(f"s_add_u32 s{S_WF}, s{S_WF}, {WSZ}")
    a(flat(dma_w(typ)))
    a(f"s_add_u32 s{S_XF}, s{S_XF}, {XS}\ns_sub_u32 s{S_WF}, s{S_WF}, {WSZ}")
    if typ == "Y":
        a(f"s_mov_b32 s{S_J}, s{S_KX}")
    a(kstep_items(typ))
    n, g, r, c = 206, 207, 208, 209
    a(f"v_and_b32 v{n}, 15, v0\nv_lshrrev_b32 v{g}, 4, v0\nv_bfe_u32 v{r}, v0, 2, 2\nv_and_b32 v{c}, 3, v0")
    a(f"v_lshrrev_b32 v{t0}, 1, v{n}\nv_xor_b32 v{t0}, v{g}, v{t0}\nv_lshlrev_b32 v{t0}, 4, v{t0}")
    a(f"v_lshl_add_u32 v{t0}, v{n}, 7, v{t0}")
    a(f"s_lshl_b32 s{T}, s{S_HALF}, 14")
    a(f"v_add_u32 v{V_XA0}, s{T}, v{t0}\nv_xor_b32 v{V_XA1}, 64, v{V_XA0}")
    if typ == "A":
        a(f"v_and_b32 v{t0}, 7, v{n}\nv_lshrrev_b32 v{t1}, 3, v{n}\nv_lshl_add_u32 v{t0}, v{t1}, 4, v{t0}\nv_add_u32 v{t0}, 104, v{t0}")
        a(f"v_add_u32 v{t1}, 256, v{n}")
        a(f"s_cmp_eq_u32 s{S_HALF}, 0\ns_cselect_b64 vcc, -1, 0\nv_cndmask_b32 v{t0}, v{t0}, v{t1}, vcc")
        a(f"v_bfe_u32 v{t1}, v{t0}, 1, 3\nv_xor_b32 v{t1}, v{g}, v{t1}\nv_lshlrev_b32 v{t1}, 4, v{t1}")
        a(f"v_lshl_add_u32 v{V_HA0}, v{t0}, 7, v{t1}\nv_xor_b32 v{V_HA1}, 64, v{V_HA0}")
    a(f"v_lshl_add_u32 v{t0}, v{g}, 3, v{r}")
    a(f"v_lshrrev_b32 v{t1}, 1, v{r}\nv_and_b32 v{t2}, 1, v{g}\nv_lshl_or_b32 v{t1}, v{t2}, 1, v{t1}")
    a(f"v_lshlrev_b32 v{t3}, 3, v{c}\nv_lshl_add_u32 v{t3}, v{t0}, 7, v{t3}")
    for b in range(6):
        if typ == "A":
            a(f"s_lshl_b32 s{T}, s{S_CH}, 1\ns_add_u32 s{T}, s{T}, {4 * (b >> 1) + (b & 1)}")
        elif typ == "Z":
            if b < 4:
                a(f"s_lshl_b32 s{T}, s{S_CH}, 2\ns_add_u32 s{T}, s{T}, {b}")
            else:
                a(f"s_lshl_b32 s{T}, s{S_CH}, 1\ns_add_u32 s{T}, s{T}, {8 + b - 4}")
        else:
            a(f"s_mul_i32 s{T}, s{S_CH}, 6\ns_add_u32 s{T}, s{T}, {b}")
        a(f"s_lshr_b32 s{T + 1}, s{T}, 2\ns_lshl_b32 s{T + 1}, s{T + 1}, 13\ns_add_u32 s{T + 1}, s{T + 1}, {WS0}\ns_and_b32 s{T}, s{T}, 3")
        a(f"v_xor_b32 v{t4}, s{T}, v{t1}\nv_lshl_add_u32 v{t4}, v{t4}, 5, v{t3}\nv_add_u32 v{V_WA + b}, s{T + 1}, v{t4}")
    if typ == "A":
        a(f"v_xor_b32 v{t4}, s{S_CH}, v{t2}\nv_lshlrev_b32 v{t4}, 5, v{t4}\nv_lshl_add_u32 v{t4}, v{t0}, 6, v{t4}")
        a(f"v_lshl_add_u32 v{t4}, v{c}, 3, v{t4}\nv_add_u32 v{V_EA}, {WS0 + 24576}, v{t4}")
        a(f"v_lshlrev_b32 v{t0}, 2, v{g}\nv_sub_u32 v{t0}, v{n}, v{t0}")
        a(f"v_lshlrev_b32 v{t5}, 2, v{g}")
        a(f"s_mov_b32 s{T}, {f2u(-1e9 * 32 ** 0.5):#x}\nv_mov_b32 v{t4}, s{T}")
        a(f"s_lshl_b32 s{T + 1}, s{S_HALF}, 7\ns_add_u32 s{T + 1}, s{T + 1}, s{S_T0}\ns_cmp_eq_u32 s{T + 1}, 0")
        a(f"s_cselect_b32 s{T + 1}, 0, -1\ns_mov_b32 s{T + 2}, s{T + 1}\ns_mov_b32 s{T + 3}, s{T + 1}")
        hm = T + 2
        assert hm % 2 == 1
        hm = T + 3
        a(f"s_mov_b32 s{hm + 1}, s{T + 1}")
        assert hm % 2 == 0
        for i in range(4):
            a(f"v_subrev_u32 v{t1}, {i}, v{t0}")
            a(f"v_cmp_gt_u32 vcc, 8, v{t1}\nv_cndmask_b32 v{i}, v{t4}, 0, vcc")
            a(f"v_cmp_ge_i32 vcc, -9, v{t1}\nv_cndmask_b32 v{4 + i}, v{t4}, 0, vcc")
            a(f"s_and_b64 vcc, vcc, {sr(hm, 2)}\nv_cndmask_b32 v{12 + i}, v{t4}, 0, vcc")
            a(f"v_cmp_ge_i32 vcc, -1, v{t1}\nv_add_u32 v{t2}, {i}, v{t5}\nv_cmp_gt_u32 {sr(T + 5, 2)}, 8, v{t2}")
            a(f"s_and_b64 vcc, vcc, {sr(T + 5, 2)}\ns_and_b64 vcc, vcc, {sr(hm, 2)}\nv_cndmask_b32 v{8 + i}, v{t4}, 0, vcc")
    elif typ == "Y":
        a(f"v_lshlrev_b32 v{t4}, 4, v{g}\nv_add_u32 v{V_EA}, {GATE_LDS}, v{t4}\nv_add_u32 v{V_EA}, s{S_KE}, v{V_EA}")
        a(f"s_sub_u32 s{S_EOFF}, s{S_J}, s{S_KE}\ns_mov_b32 s{S_KE}, s{S_J}")
    srd_from(a, S_PF0, P_WSP, 2048 * 4096)
    srd_from(a, S_PF1, P_WO, 1024 * 2048)
    srd_from(a, S_PF2, P_WOUT, 1792 * 2048)
    a(f"s_mov_b32 s{S_J}, 0\ns_mov_b32 s{S_D0}, {XS}\ns_mov_b32 s{S_D1}, {XS}\ns_mov_b32 s{S_D2}, {-2 * XS}\ns_mov_b32 s{S_DW}, {WSZ}")


def prefetch_items():
    T = S_T
    return [f"v_mov_b32 v226, 0",
            f"buffer_load_dword v{V_C0}, v226, {sr(S_DBG, 4)}, 0 offen sc1",
            "v_mbcnt_lo_u32_b32 v224, -1, 0", "v_mbcnt_hi_u32_b32 v224, -1, v224",
            f"s_bfe_u32 s{T}, s2, 0x20001", f"s_lshl_b32 s{T}, s{T}, 9", f"s_lshr_b32 s{T + 1}, s2, 3", f"s_lshl_b32 s{T + 1}, s{T + 1}, 4",
            f"s_add_u32 s{T}, s{T}, s{T + 1}", f"s_lshl_b32 s{T + 1}, s{S_WAVE}, 2", f"s_add_u32 s{T}, s{T}, s{T + 1}",
            f"s_lshl_b32 s{T}, s{T}, 12", f"s_add_u32 s{T + 1}, s{T}, 8192",
            "v_lshlrev_b32 v225, 7, v224", "v_and_b32 v226, 0xf80, v225", "v_lshrrev_b32 v224, 5, v224", "v_lshl_add_u32 v224, v224, 12, v226",
            f"buffer_load_dword a160, v224, {sr(S_PF0, 4)}, s{T} offen",
            f"buffer_load_dword a161, v224, {sr(S_PF0, 4)}, s{T + 1} offen",
            f"s_lshl_b32 s{T + 2}, s{S_WAVE}, 8", f"s_add_u32 s{T + 2}, s{T + 2}, s2", f"s_lshl_b32 s{T + 2}, s{T + 2}, 13",
            f"v_add_u32 v225, s{T + 2}, v225", "v_subrev_u32 v226, 0x200000, v225",
            f"buffer_load_dword a162, v225, {sr(S_PF1, 4)}, 0 offen",
            f"buffer_load_dword a163, v226, {sr(S_PF2, 4)}, 0 offen"]


def step(a, typ, kind):
    nx = 9 if typ == "A" else 8
    stride = 6144 if typ == "A" else 7168
    dma = kind in ("first", "mid")
    m = mfma_list(typ, SET[0], zero=(kind == "first"))
    N = len(m)
    sl = Slots(N)
    if dma:
        dx = dma_x(typ)
        sl.chain(dx, 1, (N - 12) / len(dx))
    last = sl.chain(frag_reads(typ, 1), 0, 1)[-1]
    if kind != "last":
        upd = [f"v_add_u32 v{V_XA1}, s{S_D0}, v{V_XA1}", f"v_add_u32 v{V_XA0}, s{S_D0}, v{V_XA0}"]
        if typ == "A":
            upd += [f"v_add_u32 v{V_HA1}, s{S_D0}, v{V_HA1}", f"v_add_u32 v{V_HA0}, s{S_D0}, v{V_HA0}",
                    f"v_add_u32 v{V_EA}, s{S_DW}, v{V_EA}"]
        elif typ == "Y":
            upd += [f"v_add_u32 v{V_EA}, s{S_EOFF}, v{V_EA}"]
        upd += [f"v_add_u32 v{V_WA + b}, s{S_DW}, v{V_WA + b}" for b in range(6)]
        sl.chain(upd, last + 1, 1)
    a(sl.emit(m))
    if kind == "last":
        a("s_waitcnt lgkmcnt(0)")
    else:
        a(f"s_waitcnt vmcnt({nx if dma else 0}) lgkmcnt(0)\ns_barrier")
    m = mfma_list(typ, SET[1])
    sl = Slots(N)
    lastw = last = 0
    if dma:
        dw = dma_w(typ)
        lastw = sl.chain(dw, 0, (N * 0.6) / len(dw))[-1]
    if kind != "last":
        last = sl.chain(frag_reads(typ, 0), 0, 1)[-1]
    book = []
    if dma:
        book += [f"s_add_u32 s{S_XF}, s{S_XF}, s{S_D2}", f"s_add_u32 s{S_WF}, s{S_WF}, s{S_DW}"]
    if typ == "Y" and kind != "last":
        book += [f"s_sub_u32 s{S_EOFF}, s{S_KX}, s{S_KE}", f"s_mov_b32 s{S_KE}, s{S_KX}"]
    if dma:
        book += kstep_items(typ)
    if kind != "last":
        book += [f"s_sub_u32 s{S_DW}, 0, s{S_DW}", f"s_mov_b32 s{S_T}, s{S_D0}", f"s_mov_b32 s{S_D0}, s{S_D1}",
                 f"s_mov_b32 s{S_D1}, s{S_D2}", f"s_mov_b32 s{S_D2}, s{S_T}"]
    if kind == "mid":
        book += [f"s_add_u32 s{S_J}, s{S_J}, 1"]
    if kind == "pre":
        book += prefetch_items()
    sl.chain(book, max(lastw, last) + 1, 1)
    a(sl.emit(m))
    if kind != "last":
        a("s_waitcnt lgkmcnt(0)")


def mainloop(a, typ, tag, prof):
    nx = 9 if typ == "A" else 8
    nw = 7 if typ == "A" else 6
    a(f"s_waitcnt vmcnt({nx + nw})\ns_barrier")
    prof.stamp(a, 1)
    a(frag_reads(typ, 0))
    a("s_waitcnt lgkmcnt(0)")
    step(a, typ, "first")
    a.label(f"L_{tag}_loop")
    step(a, typ, "mid")
    a(f"s_cmp_lt_u32 s{S_J}, 13\ns_cbranch_scc1 L_{tag}_loop")
    step(a, typ, "pre")
    step(a, typ, "last")
    prof.stamp(a, 2)
    a("s_waitcnt vmcnt(4)")
    check(a, V_C0, ("ge", 64), f"s{S_TMP}")
    a(f"s_cbranch_scc1 L_{tag}_c0_out\nv_mov_b32 v226, 0")
    spin(a, f"L_{tag}_c0", f"buffer_load_dword v{V_C0}, v226, {sr(S_DBG, 4)}, 0 offen sc1", V_C0, ("ge", 64), f"s{S_CNT}", f"s{S_TMP}")


def set_flag(a, label, base, soff, vt):
    a(f"s_cmp_eq_u32 s{S_WAVE}, 0\ns_cbranch_scc0 {label}")
    a(f"v_mov_b32 v{vt}, {base:#x}\nv_mov_b32 v{vt + 1}, 1\ns_mov_b64 exec, 1")
    a(f"buffer_store_dword v{vt + 1}, v{vt}, {sr(S_WS, 4)}, {soff} offen sc1\ns_mov_b64 exec, -1")
    a.label(label)


def clear_slots(a):
    T = S_T
    for i in range(4):
        a(f"v_mov_b32 v{200 + i}, -1")
    a(f"v_lshlrev_b32 v204, 4, v0\nv_mov_b32 v205, 0")
    a(f"s_lshl_b32 s{T}, s{S_RB}, 1\ns_add_u32 s{T}, s{T}, s{S_PAR}")
    a(f"s_lshl_b32 s{T + 1}, s{T}, 14\ns_lshl_b32 s{T + 2}, s{S_WAVE}, 12\ns_add_u32 s{T + 1}, s{T + 1}, s{T + 2}\ns_add_u32 s{T + 1}, s{T + 1}, {WS_STATS:#x}")
    for i in range(4):
        off = f" offset:{i * 1024}" if i else ""
        a(f"buffer_store_dwordx4 v[200:203], v204, {sr(S_WS, 4)}, s{T + 1} offen{off} sc1")
    a(f"v_and_b32 v206, 31, v0\nv_lshlrev_b32 v206, 2, v206")
    a(f"s_lshl_b32 s{T + 1}, s{S_RB}, 7\ns_add_u32 s{T + 1}, s{T + 1}, {FL_F:#x}\ns_lshl_b32 s{T}, s{T}, 7\ns_add_u32 s{T}, s{T}, {FL_G:#x}")
    a(f"buffer_store_dword v205, v206, {sr(S_WS, 4)}, s{T + 1} offen sc1")
    a(f"buffer_store_dword v205, v206, {sr(S_WS, 4)}, s{T + 1} offen offset:1024 sc1")
    a(f"buffer_store_dword v205, v206, {sr(S_WS, 4)}, s{T} offen sc1")
    a(f"v_mov_b32 v206, 1\ns_waitcnt vmcnt(0)\ns_barrier\ns_mov_b64 exec, 1")
    a(f"buffer_atomic_add v206, v205, {sr(S_DBG, 4)}, 0 offen sc1\ns_mov_b64 exec, -1")


def lane16(a, v):
    a(f"v_mbcnt_lo_u32_b32 v{v}, -1, 0\nv_mbcnt_hi_u32_b32 v{v}, -1, v{v}")


def h1_stores(a, blocks, vaddr, tmp, s_fb0, sflags=""):
    T = S_T
    ncol = len(blocks[0])
    a(f"s_lshl_b32 s{T}, s{S_RB}, 3\ns_lshl_b32 s{T + 1}, s{S_HALF}, 2\ns_add_u32 s{T}, s{T}, s{T + 1}")
    a(f"s_mul_i32 s{T}, s{T}, 112\ns_add_u32 s{T}, s{T}, {s_fb0}\ns_lshl_b32 s{T}, s{T}, 10\ns_add_u32 s{T}, s{T}, {WS_H1:#x}")
    k = 0
    for i in range(4):
        for c in range(ncol):
            t = tmp[k % len(tmp)]
            k += 1
            srcs = []
            for par in range(2):
                b = blocks[2 * i + par][c]
                if isinstance(b, tuple):
                    u = tmp[k % len(tmp)]
                    k += 1
                    for e in range(4):
                        a(f"v_accvgpr_read_b32 v{u + e}, a{b[1] + e}")
                    b = u
                srcs.append(b)
            for par in range(2):
                a(f"v_cvt_pk_bf16_f32 v{t + 2 * par}, v{srcs[par]}, v{srcs[par] + 1}")
                a(f"v_cvt_pk_bf16_f32 v{t + 2 * par + 1}, v{srcs[par] + 2}, v{srcs[par] + 3}")
            if c >= 4 and c % 4 == 0:
                a(f"s_add_u32 s{T + 1}, s{T}, {c * 1024}")
            so = T if c < 4 else T + 1
            off = f" offset:{(c % 4) * 1024}" if c % 4 else ""
            a(f"buffer_store_dwordx4 {vr(t, 4)}, v{vaddr}, {sr(S_WS, 4)}, s{so} offen{off} {sflags}")
        if i < 3:
            a(f"s_add_u32 s{T}, s{T}, {112 * 1024}")


def epilogue_A(a, prof, sflags=""):
    T = S_T
    Q, K, V = ACC, ACC + 64, ACC + 136
    VL = 224
    lane16(a, VL)
    a(f"v_lshlrev_b32 v{VL}, 4, v{VL}")
    a(f"s_lshl_b32 s{T + 8}, s{S_PAR}, 1\ns_add_u32 s{T + 8}, s{T + 8}, s{S_CH}")
    h1_stores(a, [[("a", A_EX + 4 * tb)] for tb in range(8)], VL, [228, 232, 236, 240, 244, 248], f"s{T + 8}", sflags)
    for i in range(32):
        a(f"v_cvt_pk_bf16_f32 v{Q + i}, v{Q + 2 * i}, v{Q + 2 * i + 1}")
    for i in range(36):
        a(f"v_cvt_pk_bf16_f32 v{K + i}, v{K + 2 * i}, v{K + 2 * i + 1}")
    varr = {(0, 0): Q + 32, (0, 1): Q + 42, (1, 0): Q + 52, (1, 1): K + 36}
    for par in range(2):
        for c in range(2):
            d = varr[(par, c)]
            for pos, tb in enumerate([8, par, par + 2, par + 4, par + 6]):
                s = V + (tb * 2 + c) * 4
                a(f"v_cvt_pk_bf16_f32 v{d + 2 * pos}, v{s}, v{s + 1}")
                a(f"v_cvt_pk_bf16_f32 v{d + 2 * pos + 1}, v{s + 2}, v{s + 3}")
    ONES = K + 48
    for i in range(4):
        a(f"v_mov_b32 v{ONES + i}, 0x3f803f80")
    cs = 32 ** -0.5 * 1.4426950408889634
    SC = T + 3
    assert SC % 2 == 0
    a(f"s_mov_b32 s{SC}, {f2u(cs):#x}\ns_mov_b32 s{SC + 1}, {f2u(cs):#x}")
    a(f"s_lshl_b32 s{T}, s{S_RB}, 3\ns_lshl_b32 s{T + 1}, s{S_HALF}, 2\ns_add_u32 s{T}, s{T}, s{T + 1}")
    a(f"s_mul_i32 s{T}, s{T}, 88\ns_add_u32 s{T}, s{T}, s{T + 8}\ns_lshl_b32 s{T}, s{T}, 11")
    if WS_ACT:
        a(f"s_add_u32 s{T}, s{T}, {WS_ACT:#x}")
    S, O, SM, MX = V, V + 32, 228, 244
    for batch in range(2):
        tbs = [4 * batch + i for i in range(4)]
        for i, tb in enumerate(tbs):
            prev = 8 if tb < 2 else tb - 2
            bias = (8 + 4 * tb) if tb < 2 else 4
            a(mfma(vr(S + 8 * i, 4), vr(K + 4 * prev, 4), vr(Q + 4 * tb, 4), vr(bias, 4)))
            a(mfma(vr(S + 8 * i + 4, 4), vr(K + 4 * tb, 4), vr(Q + 4 * tb, 4), vr(0, 4)))
        for step in range(4):
            for i in range(4):
                s, mx = S + 8 * i, MX + 2 * i
                if step == 0:
                    a(f"v_max3_f32 v{mx}, v{s}, v{s + 1}, v{s + 2}")
                elif step < 3:
                    a(f"v_max3_f32 v{mx}, v{mx}, v{s + 2 * step + 1}, v{s + 2 * step + 2}")
                else:
                    a(f"v_max_f32 v{mx}, v{mx}, v{s + 7}")
        for sw in ("v_permlane32_swap_b32", "v_permlane16_swap_b32"):
            for i in range(4):
                a(f"v_mov_b32 v{MX + 2 * i + 1}, v{MX + 2 * i}")
            for i in range(4):
                a(f"{sw} v{MX + 2 * i}, v{MX + 2 * i + 1}")
            for i in range(4):
                a(f"v_max_f32 v{MX + 2 * i}, v{MX + 2 * i}, v{MX + 2 * i + 1}")
        for i in range(4):
            a(f"v_mul_f32 v{MX + 2 * i}, {f2u(-cs):#x}, v{MX + 2 * i}")
        for i in range(4):
            for e in range(4):
                p = S + 8 * i + 2 * e
                a(f"v_pk_fma_f32 {vr(p, 2)}, {vr(p, 2)}, {sr(SC, 2)}, {vr(MX + 2 * i, 2)} op_sel_hi:[1,1,0]")
        for i in range(4):
            for e in range(8):
                a(f"v_exp_f32 v{S + 8 * i + e}, v{S + 8 * i + e}")
        for i in range(4):
            for e in range(4):
                a(f"v_cvt_pk_bf16_f32 v{S + 8 * i + e}, v{S + 8 * i + 2 * e}, v{S + 8 * i + 2 * e + 1}")
        for i, tb in enumerate(tbs):
            par, pos = tb & 1, tb >> 1
            a(mfma(vr(SM + 4 * i, 4), vr(ONES, 4), vr(S + 8 * i, 4), "0"))
            for c in range(2):
                a(mfma(vr(O + 8 * i + 4 * c, 4), vr(varr[(par, c)] + 2 * pos, 4), vr(S + 8 * i, 4), "0"))
        for i in range(4):
            a(f"v_rcp_f32 v{SM + 4 * i}, v{SM + 4 * i}")
        for i in range(4):
            for e in range(4):
                p = O + 8 * i + 2 * e
                a(f"v_pk_mul_f32 {vr(p, 2)}, {vr(p, 2)}, {vr(SM + 4 * i, 2)} op_sel_hi:[1,0]")
        for i, tb in enumerate(tbs):
            for e in range(4):
                a(f"v_cvt_pk_bf16_f32 v{O + 8 * i + e}, v{O + 8 * i + 2 * e}, v{O + 8 * i + 2 * e + 1}")
            off = f" offset:{(tb & 1) * 1024}" if tb & 1 else ""
            a(f"buffer_store_dwordx4 {vr(O + 8 * i, 4)}, v{VL}, {sr(S_WS, 4)}, s{T} offen{off} {sflags}")
            if tb & 1 and tb < 7:
                a(f"s_add_u32 s{T}, s{T}, {88 * 2048}")
        if batch == 0:
            a("s_waitcnt vmcnt(4)\ns_barrier")
            set_flag(a, "L_p1a_hflag", FL_H, f"s{S_FOFF}", 252)


def epilogue_Y(a, prof, sflags=""):
    T = S_T
    VL = 224
    lane16(a, VL)
    a(f"v_and_b32 v{VL + 1}, 15, v{VL}\nv_lshlrev_b32 v{VL}, 4, v{VL}")
    a(f"s_mul_i32 s{T + 8}, s{S_PAR}, 12\ns_mul_i32 s{T + 7}, s{S_CH}, 6\ns_add_u32 s{T + 8}, s{T + 8}, s{T + 7}\ns_add_u32 s{T + 8}, s{T + 8}, 88")
    h1_stores(a, [[ACC + (tb * 6 + c) * 4 for c in range(6)] for tb in range(8)], VL, [228, 232, 236, 240], f"s{T + 8}", sflags)
    G = 0
    for tb in range(8):
        a(f"v_accvgpr_read_b32 v{G + tb}, a{A_EX + 4 * tb}")
    for tb in range(8):
        a(f"v_mul_f32 v{G + tb}, {f2u(-1.4426950408889634):#x}, v{G + tb}")
    for tb in range(8):
        a(f"v_exp_f32 v{G + tb}, v{G + tb}")
    for tb in range(8):
        a(f"v_add_f32 v{G + tb}, 1.0, v{G + tb}")
    for tb in range(8):
        a(f"v_rcp_f32 v{G + tb}, v{G + tb}")
    a(f"v_lshlrev_b32 v{VL + 1}, 3, v{VL + 1}")
    a(f"s_lshl_b32 s{T}, s{S_HALF}, 7\ns_add_u32 s{T}, s{T}, s{S_T0}\ns_lshl_b32 s{T}, s{T}, 2\ns_add_u32 s{T}, s{T}, {WS_GATE:#x}")
    for i in range(4):
        off = f" offset:{i * 128}" if i else ""
        a(f"buffer_store_dwordx2 {vr(G + 2 * i, 2)}, v{VL + 1}, {sr(S_WS, 4)}, s{T} offen{off} {sflags}")


def epilogue_Z(a, tag, prof, sflags=""):
    T = S_T
    Z, H = ACC, ACC + 128
    VL, VK = 224, 226
    ST = 208
    lane16(a, VL)
    a(f"v_mov_b32 v{VK}, {f2u(GELU_C1):#x}\nv_mov_b32 v{VK + 1}, {f2u(GELU_C0):#x}")
    tmps = [228 + 2 * i for i in range(8)]
    SP, QP = 244, 246
    for tb in range(8):
        xs = [Z + tb * 16 + 2 * i for i in range(8)]
        a(gelu_pairs(xs, tmps, VK))
        a(f"v_pk_add_f32 {vr(SP, 2)}, {vr(xs[0], 2)}, {vr(xs[1], 2)}")
        a(f"v_pk_mul_f32 {vr(QP, 2)}, {vr(xs[0], 2)}, {vr(xs[0], 2)}")
        for i in range(1, 8):
            if i > 1:
                a(f"v_pk_add_f32 {vr(SP, 2)}, {vr(SP, 2)}, {vr(xs[i], 2)}")
            a(f"v_pk_fma_f32 {vr(QP, 2)}, {vr(xs[i], 2)}, {vr(xs[i], 2)}, {vr(QP, 2)}")
        a(f"v_add_f32 v{ST + tb}, v{SP}, v{SP + 1}\nv_add_f32 v{ST + 8 + tb}, v{QP}, v{QP + 1}")
    for i in range(8):
        a(f"v_permlane32_swap_b32 v{ST + i}, v{ST + 8 + i}")
    for i in range(8):
        a(f"v_add_f32 v{ST + i}, v{ST + i}, v{ST + 8 + i}")
    for i in range(4):
        a(f"v_permlane16_swap_b32 v{ST + i}, v{ST + 4 + i}")
    for i in range(4):
        a(f"v_add_f32 v{ST + i}, v{ST + i}, v{ST + 4 + i}")
    prof.stamp(a, 3)
    LB = XS
    a(f"v_lshlrev_b32 v{VL + 1}, 4, v{VL}")
    a(f"s_lshl_b32 s{T}, s{S_WAVE}, 10\ns_add_u32 s{T}, s{T}, {LB}\nv_add_u32 v228, s{T}, v{VL + 1}")
    a(f"ds_write_b128 v228, {vr(ST, 4)}\nv_xor_b32 v229, 0x400, v228")
    a(f"s_lshl_b32 s{T + 7}, s{S_RB}, 1\ns_add_u32 s{T + 7}, s{T + 7}, s{S_HALF}\ns_lshl_b32 s{T + 7}, s{T + 7}, 14\ns_add_u32 s{T + 7}, s{T + 7}, {WS_STATS:#x}")
    a(f"s_lshl_b32 s{T + 5}, s{S_PAR}, 10\ns_add_u32 s{T + 5}, s{T + 5}, s{T + 7}")
    a("s_waitcnt lgkmcnt(0)\ns_barrier")
    a(f"ds_read_b128 {vr(ST + 4, 4)}, v229\ns_waitcnt lgkmcnt(0)")
    a(f"v_pk_add_f32 {vr(ST, 2)}, {vr(ST, 2)}, {vr(ST + 4, 2)}\nv_pk_add_f32 {vr(ST + 2, 2)}, {vr(ST + 2, 2)}, {vr(ST + 6, 2)}")
    a(f"s_cmp_eq_u32 s{S_CH}, 0\ns_cbranch_scc0 L_{tag}_nopub")
    a(f"buffer_store_dwordx4 {vr(ST, 4)}, v{VL + 1}, {sr(S_WS, 4)}, s{T + 5} offen sc1")
    a.label(f"L_{tag}_nopub")
    a(f"s_lshl_b32 s{T + 8}, s{S_PAR}, 2\ns_lshl_b32 s{T + 4}, s{S_CH}, 1\ns_add_u32 s{T + 8}, s{T + 8}, s{T + 4}\ns_add_u32 s{T + 8}, s{T + 8}, 32")
    h1_stores(a, [[H + (tb * 2 + c) * 4 for c in range(2)] for tb in range(8)], VL + 1, [232, 236, 240, 244], f"s{T + 8}", sflags)
    a(f"s_mul_i32 s{T}, s{S_CH}, {7 * 1024}\ns_add_u32 s{T + 6}, s{T + 7}, s{T}\ns_add_u32 s{T + 5}, s{T + 6}, 4096")
    loads = [f"buffer_load_dwordx4 {vr(H + 4 * i, 4)}, v{VL + 1}, {sr(S_WS, 4)}, s{T + 6 if i < 4 else T + 5} offen"
             + (f" offset:{(i % 4) * 1024}" if i % 4 else "") + " sc1" for i in range(7)]
    tree = [f"v_max3_u32 v229, v{H}, v{H + 1}, v{H + 2}"] + [f"v_max3_u32 v229, v229, v{H + i}, v{H + i + 1}" for i in range(3, 27, 2)] \
        + [f"v_max_u32 v229, v229, v{H + 27}"]
    spin(a, f"L_{tag}_gather", loads, 229, ("no_sentinel", tree), f"s{S_CNT}", f"s{S_TMP}")
    prof.stamp(a, 4)
    for i in range(1, 7):
        a(f"v_pk_add_f32 {vr(H, 2)}, {vr(H, 2)}, {vr(H + 4 * i, 2)}")
        a(f"v_pk_add_f32 {vr(H + 2, 2)}, {vr(H + 2, 2)}, {vr(H + 4 * i + 2, 2)}")
    a(f"ds_write_b128 v228, {vr(H, 4)} offset:4096")
    a(f"v_and_b32 v229, 15, v{VL}\nv_lshlrev_b32 v228, 4, v229\ns_lshl_b32 s{T}, s{S_HALF}, 11\ns_add_u32 s{T}, s{T}, {LB + 4096}\nv_add_u32 v228, s{T}, v228")
    a("s_waitcnt lgkmcnt(0)\ns_barrier")
    for ch in range(2):
        for ro in range(4):
            a(f"ds_read_b128 {vr(H + 16 * ch + 4 * ro, 4)}, v228 offset:{ch * 1024 + ro * 256}")
    set_flag(a, f"L_{tag}_hflag", FL_H, f"s{S_FOFF}", 252)
    a(f"v_bfe_u32 v230, v{VL}, 4, 1\nv_and_b32 v231, 1, v229\nv_lshl_or_b32 v230, v231, 1, v230")
    a(f"v_bfe_u32 v231, v229, 2, 1\nv_lshl_or_b32 v230, v231, 2, v230\nv_bfe_u32 v231, v229, 1, 1\nv_lshl_or_b32 v230, v231, 3, v230")
    a(f"v_lshrrev_b32 v231, 3, v229\nv_lshl_or_b32 v230, v231, 4, v230\nv_lshlrev_b32 v230, 5, v230")
    a(f"v_lshrrev_b32 v231, 5, v{VL}\nv_lshl_or_b32 v230, v231, 4, v230")
    a(f"s_lshl_b32 s{T}, s{S_PAR}, 3\ns_lshl_b32 s{T + 1}, s{S_CH}, 2\ns_add_u32 s{T}, s{T}, s{T + 1}\ns_lshl_b32 s{T}, s{T}, 16")
    a(f"s_lshl_b32 s{T + 1}, s{S_HALF}, 7\ns_add_u32 s{T + 1}, s{T + 1}, s{S_T0}\ns_lshl_b32 s{T + 1}, s{T + 1}, 5")
    a(f"s_add_u32 s{T}, s{T}, s{T + 1}\ns_add_u32 s{T}, s{T}, {WS_Z2N:#x}")
    a("s_waitcnt lgkmcnt(0)")
    for i in range(8):
        a(f"v_pk_add_f32 {vr(H + 2 * i, 2)}, {vr(H + 2 * i, 2)}, {vr(H + 16 + 2 * i, 2)}")
    a(f"s_mov_b32 s{T + 3}, {f2u(1.0 / 1792):#x}\ns_mov_b32 s{T + 4}, {f2u(1.0 / 1792):#x}")
    for i in range(8):
        a(f"v_pk_mul_f32 {vr(H + 2 * i, 2)}, {vr(H + 2 * i, 2)}, {sr(T + 3, 2)}")
    for tb in range(8):
        a(f"v_fma_f32 v{H + 8 + tb}, -v{H + tb}, v{H + tb}, v{H + 8 + tb}")
    for tb in range(8):
        a(f"v_max_f32 v{H + 8 + tb}, 0, v{H + 8 + tb}")
    for tb in range(8):
        a(f"v_add_f32 v{H + 8 + tb}, {f2u(1e-5):#x}, v{H + 8 + tb}")
    for tb in range(8):
        a(f"v_rsq_f32 v{H + 16 + 2 * tb}, v{H + 8 + tb}")
    for tb in range(8):
        a(f"v_mul_f32 v{H + 17 + 2 * tb}, v{H + tb}, v{H + 16 + 2 * tb}")
    k = 0
    for c in range(4):
        for i in range(4):
            t = [232, 236, 240, 244, 248][k % 5]
            k += 1
            for par in range(2):
                tb = 2 * i + par
                ab = vr(H + 16 + 2 * tb, 2)
                for e in range(2):
                    p = Z + (tb * 4 + c) * 4 + 2 * e
                    a(f"v_pk_fma_f32 {vr(p, 2)}, {vr(p, 2)}, {ab}, {ab} op_sel:[0,0,1] op_sel_hi:[1,0,1] neg_lo:[0,0,1] neg_hi:[0,0,1]")
            for par in range(2):
                tb = 2 * i + par
                for e in range(2):
                    p = Z + (tb * 4 + c) * 4 + 2 * e
                    a(f"v_cvt_pk_bf16_f32 v{t + 2 * par + e}, v{p}, v{p + 1}")
            a(f"v_permlane16_swap_b32 v{t}, v{t + 2}\nv_permlane16_swap_b32 v{t + 1}, v{t + 3}")
            off = f" offset:{i * 1024}" if i else ""
            a(f"buffer_store_dwordx4 {vr(t, 4)}, v230, {sr(S_WS, 4)}, s{T} offen{off} {sflags}")
        if c < 3:
            a(f"s_add_u32 s{T}, s{T}, 65536")


def phase1(a, prof):
    T = S_T
    a(f"v_lshrrev_b32 v1, 6, v0\nv_and_b32 v0, 63, v0")
    a(f"v_readfirstlane_b32 s{S_WAVE}, v1")
    a(f"s_and_b32 s{T}, s2, 7\ns_lshr_b32 s{T + 1}, s2, 3")
    a(f"s_and_b32 s{S_RB}, s{T}, 1\ns_lshl_b32 s{S_RB}, s{S_RB}, 2\ns_and_b32 s{T + 2}, s{T + 1}, 3\ns_add_u32 s{S_RB}, s{S_RB}, s{T + 2}")
    a(f"s_lshl_b32 s{S_T0}, s{S_RB}, 8\ns_lshl_b32 s{S_FOFF}, s{S_RB}, 7")
    a(f"s_lshr_b32 s{T}, s{T}, 1\ns_lshr_b32 s{T + 1}, s{T + 1}, 2")
    a(f"s_and_b32 s{S_CH}, s{S_WAVE}, 1\ns_lshr_b32 s{S_HALF}, s{S_WAVE}, 1")
    a(f"s_lshl_b32 s{T + 2}, s{T}, 2\ns_add_u32 s{T + 2}, s{T + 2}, s{T + 1}")
    a(f"s_add_u32 s{S_ROT}, s{T + 1}, s{S_RB}" if "norot1" not in KNOB else f"s_mov_b32 s{S_ROT}, 0")
    a("s_waitcnt lgkmcnt(0)")
    srd_from(a, S_WS, P_WS, 0x10000000)
    srd_from(a, S_DBG, P_DBG, 256)
    a(f"s_cmp_ge_u32 s{T + 1}, 4\ns_cbranch_scc1 L_p1_notA")
    a(f"s_mov_b32 s{S_PAR}, s{T + 2}\ns_lshl_b32 s{T}, s{S_PAR}, 2\ns_add_u32 s{S_FOFF}, s{S_FOFF}, s{T}")
    setup(a, "A", "p1a")
    mainloop(a, "A", "p1a", prof)
    epilogue_A(a, prof, SF)
    a("s_branch L_p1_done")
    a.label("L_p1_notA")
    a(f"s_cmp_lt_u32 s{T}, 2\ns_cbranch_scc1 L_p1_Z\ns_cmp_eq_u32 s{T + 1}, 7\ns_cbranch_scc0 L_p1_Z")
    a(f"s_sub_u32 s{S_PAR}, s{T}, 2\ns_add_u32 s{T}, s{S_PAR}, 30\ns_lshl_b32 s{T}, s{T}, 2\ns_add_u32 s{S_FOFF}, s{S_FOFF}, s{T}")
    clear_slots(a)
    setup(a, "Y", "p1y")
    mainloop(a, "Y", "p1y", prof)
    epilogue_Y(a, prof, SF)
    a("s_waitcnt vmcnt(0)\ns_barrier")
    set_flag(a, "L_p1y_hflag", FL_H, f"s{S_FOFF}", 252)
    a("s_branch L_p1_done")
    a.label("L_p1_Z")
    a(f"s_max_u32 s{T}, s{T}, 2\ns_sub_u32 s{T}, s{T}, 2\ns_sub_u32 s{S_PAR}, s{T + 2}, 4\ns_sub_u32 s{S_PAR}, s{S_PAR}, s{T}")
    a(f"s_add_u32 s{T}, s{S_PAR}, 16\ns_lshl_b32 s{T}, s{T}, 2\ns_add_u32 s{S_FOFF}, s{S_FOFF}, s{T}")
    setup(a, "Z", "p1z")
    mainloop(a, "Z", "p1z", prof)
    epilogue_Z(a, "p1z", prof, SF)
    a.label("L_p1_done")
    prof.stamp(a, 5)
```

```python
from common import *
from phase1 import (S_WAVE, S_T, S_WS, S_FOFF, S_CNT, S_TMP, SF, P_WSP, P_BSP, P_WS, lane16, flat, set_flag)
import phase3

STG = 30720
NSTG = 5
S_A, S_B, S_BS = 4, 8, 12
S_TI, S_FJ, S_HALF, S_KH = 25, 26, 50, 51
S_KA, S_KB, S_FILL, S_RD, S_CA, S_CB, S_J, S_D = 28, 29, 32, 33, 34, 35, 36, 37
S_TG = 54
S_ROT, S_Q = 38, 39
S_FRB = 52
ACC = 0
V_AD, V_BD = 112, 116
V_LO, V_HI, V_ZB = 120, 121, 122
V_L = 123
V_FA, V_FX = 124, 125
V_H1 = 128
V_BSP = 156
V_T = 160
GZ = 176
SET = [0, 64]


def acc(i, c):
    return ACC + (i * 7 + c) * 4


def mfmas(s):
    return [mfma(vr(acc(i, c), 4), ar(s + 16 + 4 * c, 4), ar(s + 4 * i, 4)) for i in range(4) for c in range(7)]


def reads(s):
    ws = [f"ds_read_b128 {ar(s + 4 * i, 4)}, v{V_LO if i < 2 else V_HI} offset:{(i & 1) * 2048}" for i in range(4)]
    zs = [f"ds_read_b64_tr_b16 {ar(s + 16 + 4 * c + 2 * h, 2)}, v{V_ZB} offset:{c * 2048 + h * 256}" for c in range(7) for h in range(2)]
    return [ws[0]] + zs + ws[1:]


def dma_a():
    o = [f"s_add_u32 m0, s{S_FILL}, s{S_CA}"]
    for q in range(4):
        off = f" offset:{q * 1024}" if q else ""
        o.append(f"buffer_load_dwordx4 v{V_AD + q}, {sr(S_A, 4)}, s{S_KA} offen{off} lds")
    return o


def dma_b():
    SF = '' if 'p2plain' in KNOB else 'sc1'
    o = [f"s_add_u32 m0, s{S_FILL}, s{S_CB}"]
    for q in range(3):
        off = f" offset:{q * 1024}" if q else ""
        o.append(f"buffer_load_dwordx4 v{V_BD + q}, {sr(S_B, 4)}, s{S_KB} offen{off} {SF} lds")
    o.append(["s_mov_b32 exec_hi, 0", f"buffer_load_dwordx4 v{V_BD + 3}, {sr(S_B, 4)}, s{S_KB} offen offset:3072 {SF} lds",
              "s_mov_b32 exec_hi, -1"])
    return o


def kstep_items():
    T = S_T + 1
    return [f"s_add_u32 s{S_Q}, s{S_Q}, 1", f"s_add_u32 s{T}, s{S_Q}, s{S_ROT}", f"s_and_b32 s{T}, s{T}, 3", f"s_and_b32 s{S_KB}, s{S_Q}, -4",
            f"s_or_b32 s{S_KB}, s{S_KB}, s{T}", f"s_lshl_b32 s{S_KA}, s{S_KB}, 7", f"s_lshl_b32 s{S_KB}, s{S_KB}, 11"]


def setup(a):
    T = S_T
    t0, t1, t2, t3, t4 = V_T, V_T + 1, V_T + 2, V_T + 3, V_T + 4
    L = V_L
    lane16(a, L)
    a(f"s_and_b32 s{T}, s2, 7\ns_lshr_b32 s{T + 1}, s2, 3")
    a(f"s_lshr_b32 s{S_TI}, s{T}, 1\ns_lshl_b32 s{S_TI}, s{S_TI}, 2\ns_and_b32 s{T + 2}, s{T + 1}, 3\ns_add_u32 s{S_TI}, s{S_TI}, s{T + 2}")
    a(f"s_and_b32 s{S_FJ}, s{T}, 1\ns_lshl_b32 s{S_FJ}, s{S_FJ}, 3\ns_lshr_b32 s{T + 2}, s{T + 1}, 2\ns_add_u32 s{S_FJ}, s{S_FJ}, s{T + 2}")
    a(f"s_lshr_b32 s{S_FRB}, s{S_TI}, 1\ns_lshl_b32 s{S_FRB}, s{S_FRB}, 7")
    a(f"v_and_b32 v{V_FA}, 31, v{L}\nv_lshlrev_b32 v{V_FA}, 2, v{V_FA}\nv_add_u32 v{V_FA}, {FL_F:#x}, v{V_FA}")
    a(f"buffer_load_dword v{V_FX}, v{V_FA}, {sr(S_WS, 4)}, s{S_FRB} offen offset:1024 sc1")
    a(f"s_and_b32 s{S_HALF}, s{S_WAVE}, 1\ns_lshr_b32 s{S_KH}, s{S_WAVE}, 1")
    a(f"s_mov_b32 s{S_ROT}, s{S_TI}" if "norot2" not in KNOB else f"s_mov_b32 s{S_ROT}, 0")
    srd_from(a, S_A, P_WSP, 2048 * 4096)
    srd_from(a, S_B, P_WS, SZ_Z2N, WS_Z2N)
    srd_from(a, S_BS, P_BSP, 4096)
    a(f"v_lshrrev_b32 v{t0}, 3, v{L}\nv_and_b32 v{t1}, 7, v{L}\nv_lshrrev_b32 v{t2}, 1, v{t0}")
    a(f"v_xor_b32 v{t3}, v{t1}, v{t2}\nv_xor_b32 v{t4}, 4, v{t3}\nv_lshlrev_b32 v{t0}, 13, v{t0}")
    a(f"v_lshl_add_u32 v{t3}, v{t3}, 4, v{t0}\nv_lshl_add_u32 v{t4}, v{t4}, 4, v{t0}")
    a(f"s_lshl_b32 s{T}, s{S_TI}, 7\ns_lshl_b32 s{T + 1}, s{S_WAVE}, 5\ns_add_u32 s{T}, s{T}, s{T + 1}\ns_lshl_b32 s{T}, s{T}, 12")
    for i in range(4):
        tok = 16 * (i & 1) + (i >> 1)
        a(f"s_add_u32 s{T + 1}, s{T}, {tok * 4096 - i * 1024}")
        a(f"v_add_u32 v{V_AD + i}, s{T + 1}, v{t4 if i & 1 else t3}")
    a(f"s_mul_i32 s{T}, s{S_WAVE}, 3584\ns_and_b32 s{T + 1}, s{S_FJ}, 1\ns_mul_i32 s{T + 2}, s{S_FJ}, 7")
    a(f"v_lshl_add_u32 v{t0}, v{L}, 4, s{T}")
    for e in range(4):
        a(f"v_add_u32 v{t1}, {e * 1024}, v{t0}" if e else f"v_mov_b32 v{t1}, v{t0}")
        a(f"v_lshrrev_b32 v{t2}, 11, v{t1}\nv_and_b32 v{t1}, 0x7ff, v{t1}\nv_add_u32 v{t2}, s{T + 1}, v{t2}")
        a(f"v_cmp_eq_u32 vcc, 7, v{t2}\nv_cndmask_b32 v{t2}, v{t2}, 0, vcc\nv_add_u32 v{t2}, s{T + 2}, v{t2}")
        a(f"v_lshl_add_u32 v{t1}, v{t2}, 16, v{t1}")
        a(f"v_subrev_u32 v{V_BD + e}, {e * 1024}, v{t1}" if e else f"v_mov_b32 v{V_BD}, v{t1}")
    a(f"s_lshl_b32 s{S_CA}, s{S_WAVE}, 12\ns_add_u32 s{S_CB}, s{T}, 16384")
    n, g, r, c = V_T + 5, V_T + 6, V_T + 7, V_T + 8
    a(f"v_and_b32 v{n}, 15, v{L}\nv_lshrrev_b32 v{g}, 4, v{L}\nv_bfe_u32 v{r}, v{L}, 2, 2\nv_and_b32 v{c}, 3, v{L}")
    a(f"s_lshl_b32 s{T}, s{S_KH}, 2\nv_add_u32 v{t0}, s{T}, v{g}\nv_lshrrev_b32 v{t1}, 1, v{n}\nv_xor_b32 v{t0}, v{t0}, v{t1}")
    a(f"v_lshlrev_b32 v{t0}, 4, v{t0}\nv_lshl_add_u32 v{t0}, v{n}, 7, v{t0}")
    a(f"s_lshl_b32 s{T}, s{S_HALF}, 13\ns_lshl_b32 s{T + 1}, s{S_KH}, 12\ns_add_u32 s{T}, s{T}, s{T + 1}")
    a(f"v_add_u32 v{V_LO}, s{T}, v{t0}\nv_xor_b32 v{V_HI}, 0x1000, v{V_LO}")
    a(f"v_lshrrev_b32 v{t0}, 1, v{g}\nv_and_b32 v{t1}, 1, v{g}\nv_lshl_add_u32 v{t1}, v{t1}, 2, v{r}\nv_lshl_add_u32 v{t0}, v{t0}, 4, v{t1}")
    a(f"v_lshlrev_b32 v{t0}, 5, v{t0}\nv_lshl_add_u32 v{t0}, v{c}, 3, v{t0}")
    a(f"s_lshl_b32 s{T}, s{S_KH}, 10\ns_add_u32 s{T}, s{T}, 16384\nv_add_u32 v{V_ZB}, s{T}, v{t0}")
    a(f"s_lshl_b32 s{S_TG}, s{S_TI}, 2\ns_lshl_b32 s{T}, s{S_HALF}, 1\ns_add_u32 s{S_TG}, s{S_TG}, s{T}\ns_add_u32 s{S_TG}, s{S_TG}, s{S_KH}")
    a(f"v_and_b32 v{t0}, 1, v{L}\nv_mul_u32_u24 v{t0}, 6, v{t0}\nv_add_u32 v{t0}, s{T + 2}, v{t0}\nv_lshrrev_b32 v{t0}, 3, v{t0}")
    a(f"v_bfe_u32 v{t1}, v{L}, 1, 3\nv_lshlrev_b32 v{t1}, 7, v{t1}\nv_lshl_add_u32 v{t0}, v{t0}, 2, v{t1}")
    a(f"v_add_u32 v{V_T + 9}, {FL_F + 64:#x}, v{t0}")
    a(f"v_lshlrev_b32 v{V_T + 10}, 4, v{L}\nv_lshlrev_b32 v{V_T + 11}, 2, v{n}")


def transition(a, prof):
    T = S_T
    setup(a)
    a("s_waitcnt vmcnt(0)\ns_barrier")
    set_flag(a, "L_t1_fflag", FL_F, f"s{S_FOFF}", 252)
    prof.stamp(a, 6)
    check(a, V_FX, ("all_nonzero",), f"s{S_TMP}")
    a("s_cbranch_scc1 L_t1_h_out")
    spin(a, "L_t1_h", f"buffer_load_dword v{V_FX}, v{V_FA}, {sr(S_WS, 4)}, s{S_FRB} offen offset:1024 sc1", V_FX, ("all_nonzero",),
         f"s{S_CNT}", f"s{S_TMP}")
    VA = V_T + 10
    a(f"s_mul_i32 s{T}, s{S_TG}, 112\ns_mul_i32 s{T + 1}, s{S_FJ}, 7\ns_add_u32 s{T}, s{T}, s{T + 1}\ns_lshl_b32 s{T}, s{T}, 10\ns_add_u32 s{T}, s{T}, {WS_H1:#x}")
    a(f"s_and_b32 s{T + 2}, s{S_FJ}, 1\ns_lshl_b32 s{T + 3}, s{T + 2}, 10\ns_add_u32 s{T + 3}, s{T + 3}, s{T}")
    a(f"s_add_u32 s{T + 4}, s{T + 3}, 4096")
    a(f"s_cmp_eq_u32 s{T + 2}, 0\ns_cselect_b32 s{T + 5}, 6144, 0\ns_add_u32 s{T + 5}, s{T + 5}, s{T}")
    for c in range(6):
        off = f" offset:{(c % 4) * 1024}" if c % 4 else ""
        a(f"buffer_load_dwordx4 {vr(V_H1 + 4 * c, 4)}, v{VA}, {sr(S_WS, 4)}, s{T + 3 if c < 4 else T + 4} offen{off} {SF}")
    a(f"buffer_load_dwordx4 {vr(V_H1 + 24, 4)}, v{VA}, {sr(S_WS, 4)}, s{T + 5} offen {SF}")
    a(f"s_lshl_b32 s{T}, s{S_TG}, 6\nbuffer_load_dword v{V_BSP}, v{V_T + 11}, {sr(S_BS, 4)}, s{T} offen")
    for st in range(2):
        a(f"s_mov_b32 s{S_FILL}, {st * STG}\ns_mov_b32 s{S_Q}, {st - 1}")
        a(kstep_items())
        a(dma_a())
    VK = V_T + 12
    a(f"v_mov_b32 v{VK}, {f2u(GELU_C1):#x}\nv_mov_b32 v{VK + 1}, {f2u(GELU_C0):#x}")
    tmps = [232 + 2 * i for i in range(8)]
    for s0 in range(0, 7, 2):
        cs = list(range(s0, min(s0 + 2, 7)))
        a(f"s_waitcnt vmcnt({9 + 6 - cs[-1]})")
        for c in cs:
            for e in range(4):
                a(f"v_lshlrev_b32 v{GZ + 8 * c + 2 * e}, 16, v{V_H1 + 4 * c + e}")
                a(f"v_and_b32 v{GZ + 8 * c + 2 * e + 1}, 0xffff0000, v{V_H1 + 4 * c + e}")
        a(gelu_pairs([GZ + 8 * c + 2 * e for c in cs for e in range(4)], tmps, VK))
    prof.stamp(a, 7)
    spin(a, "L_t1_f", f"buffer_load_dword v{V_FX}, v{V_T + 9}, {sr(S_WS, 4)}, 0 offen sc1", V_FX, ("all_nonzero",), f"s{S_CNT}", f"s{S_TMP}")
    prof.stamp(a, 8)
    for st in range(NSTG):
        a(f"s_mov_b32 s{S_FILL}, {st * STG}\ns_mov_b32 s{S_Q}, {st - 1}")
        a(kstep_items())
        if st >= 2:
            a(dma_a())
        a(flat(dma_b()))
    a(f"s_mov_b32 s{S_FILL}, 0")
    a(kstep_items())
    for i in range(112):
        a(f"v_mov_b32 v{ACC + i}, 0")
    a(f"s_mov_b32 s{S_J}, 0\ns_mov_b32 s{S_RD}, {STG}")
    a("s_waitcnt vmcnt(28)\ns_barrier")
    prof.stamp(a, 9)
    a(reads(SET[0]))
    for v in (V_LO, V_HI, V_ZB):
        a(f"v_add_u32 v{v}, {STG}, v{v}")


def step(a, j, loop=False):
    T = S_T
    u = j & 1
    dma = loop or j <= 26
    vm = {28: 17, 29: 9, 30: 0}.get(j, 24) if not loop else 24
    if not loop and j == 31:
        a("s_waitcnt lgkmcnt(0)\ns_barrier")
    else:
        a(f"s_waitcnt vmcnt({vm}) lgkmcnt(0)")
        if not (loop and 'p2nobar' in KNOB):
            a("s_barrier")
    if not loop and j == 30:
        check(a, V_FX, ("all_nonzero",), f"s{S_TMP}")
        a("s_cbranch_scc1 L_p2_f_out")
        spin(a, "L_p2_f", f"buffer_load_dword v{V_FX}, v{V_FA}, {sr(S_WS, 4)}, s{S_FRB} offen sc1", V_FX, ("all_nonzero",),
             f"s{S_CNT}", f"s{S_TMP}")
    m = mfmas(SET[u])
    if loop and 'p2nomfma' in KNOB:
        m = ["s_nop 0"] * len(m)
    sl = Slots(len(m), cap=2)
    lastd = last = 0
    if dma:
        d = dma_a() + dma_b()
        if loop and 'p2noA' in KNOB:
            d = dma_b()
        if loop and 'p2noB' in KNOB:
            d = dma_a()
        if loop and 'p2nodma' in KNOB:
            d = ["s_nop 0"]
        lastd = sl.chain(d, 0, 2.3)[-1]
    if loop or j < 31:
        last = sl.chain(reads(SET[1 - u]) if not (loop and 'p2nord' in KNOB) else ["s_nop 0"] * 18, 0, 1)[-1]
    book = []
    if loop or j < 30:
        book += [f"s_add_u32 s{T}, s{S_RD}, {STG}", [f"s_cmp_eq_u32 s{T}, {NSTG * STG}", f"s_cselect_b32 s{T}, 0, s{T}"],
                 f"s_sub_u32 s{S_D}, s{T}, s{S_RD}"]
        book += [f"v_add_u32 v{v}, s{S_D}, v{v}" for v in (V_LO, V_HI, V_ZB)]
    sl.chain(book, last - 2, 1)
    book2 = []
    if dma:
        book2 += [f"s_mov_b32 s{S_FILL}, s{S_RD}"] + kstep_items()
    if loop or j < 30:
        book2 += [f"s_mov_b32 s{S_RD}, s{T}"]
    if loop and u == 1:
        book2 += [f"s_add_u32 s{S_J}, s{S_J}, 1"]
    extra = []
    if not loop:
        if j == 27:
            extra = [f"buffer_load_dword v{V_FX}, v{V_FA}, {sr(S_WS, 4)}, s{S_FRB} offen sc1"]
        elif j == 28:
            extra = phase3.setup_items(0)
        elif j == 29:
            extra = phase3.setup_items(1)
        elif j == 30:
            extra = phase3.first_loads()
    start = max(lastd, last) + 1
    sl.chain(book2, start, 0.5, strict=False)
    if extra:
        sl.chain(extra, 0, 27.0 / len(extra), strict=False)
    a(sl.emit(m))


def mainloop(a, prof):
    a.label("L_p2_loop")
    step(a, 0, loop=True)
    step(a, 1, loop=True)
    a(f"s_cmp_lt_u32 s{S_J}, 13\ns_cbranch_scc1 L_p2_loop")
    for j in range(26, 32):
        step(a, j)
    prof.stamp(a, 10)


def epilogue(a, prof):
    T = S_T
    VA = V_T + 10
    a(f"s_mul_i32 s{T}, s{S_WAVE}, 14336\nv_add_u32 v{V_T + 2}, s{T}, v{VA}")
    a(f"s_xor_b32 s{T}, s{S_WAVE}, 2\ns_mul_i32 s{T}, s{T}, 14336\nv_add_u32 v{V_T + 3}, s{T}, v{VA}")
    for k in range(14):
        a(f"ds_write_b128 v{V_T + 2}, {vr(acc(2, 0) + 4 * k, 4)} offset:{k * 1024}")
    BS = V_T + 6
    a(f"v_lshlrev_b32 v{BS}, 16, v{V_BSP}\nv_and_b32 v{BS + 2}, 0xffff0000, v{V_BSP}")
    for par in range(2):
        for k in range(14):
            p = acc(par, 0) + 2 * k
            a(f"v_pk_add_f32 {vr(p, 2)}, {vr(p, 2)}, {vr(BS + 2 * par, 2)} op_sel_hi:[1,0]")
    a(f"s_mul_i32 s{T}, s{S_TG}, 88\ns_add_u32 s{T}, s{T}, 32\ns_mul_i32 s{T + 1}, s{S_FJ}, 7\ns_and_b32 s{T + 2}, s{S_FJ}, 1")
    a(f"s_add_u32 s{T + 3}, s{T + 1}, s{T + 2}\ns_lshr_b32 s{T + 3}, s{T + 3}, 1\ns_add_u32 s{T + 3}, s{T + 3}, s{T}\ns_lshl_b32 s{T + 3}, s{T + 3}, 11")
    a(f"s_cmp_eq_u32 s{T + 2}, 0\ns_cselect_b32 s{T + 4}, 6, 0\ns_add_u32 s{T + 4}, s{T + 4}, s{T + 1}\ns_lshr_b32 s{T + 4}, s{T + 4}, 1")
    a(f"s_add_u32 s{T + 4}, s{T + 4}, s{T}\ns_lshl_b32 s{T + 4}, s{T + 4}, 11\ns_lshl_b32 s{T + 2}, s{T + 2}, 3\ns_add_u32 s{T + 4}, s{T + 4}, s{T + 2}")
    if WS_ACT:
        a(f"s_add_u32 s{T + 3}, s{T + 3}, {WS_ACT:#x}\ns_add_u32 s{T + 4}, s{T + 4}, {WS_ACT:#x}")
    a("s_waitcnt lgkmcnt(0)\ns_barrier")
    for k in range(14):
        a(f"ds_read_b128 {vr(acc(2, 0) + 4 * k, 4)}, v{V_T + 3} offset:{k * 1024}")
    prof.stamp(a, 11)

    def finish(par, c):
        for e in range(2):
            p = acc(par, c) + 2 * e
            a(f"v_pk_add_f32 {vr(p, 2)}, {vr(p, 2)}, {vr(acc(2 + par, c) + 2 * e, 2)}")
        for e in range(2):
            p = acc(par, c) + 2 * e
            a(f"v_pk_mul_f32 {vr(p, 2)}, {vr(p, 2)}, {vr(GZ + 8 * c + 4 * par + 2 * e, 2)}")

    k = 0
    for par in range(2):
        a(f"s_waitcnt lgkmcnt({7 - 7 * par})")
        for c in range(7):
            finish(par, c)
        for pp in range(3):
            t = 232 + 4 * (k % 4)
            k += 1
            for cc in range(2):
                for e in range(2):
                    p = acc(par, 2 * pp + cc) + 2 * e
                    a(f"v_cvt_pk_bf16_f32 v{t + 2 * cc + e}, v{p}, v{p + 1}")
            o = (pp & 1) * 2048 + par * 1024
            off = f" offset:{o}" if o else ""
            if pp == 2:
                a(f"s_add_u32 s{T + 5}, s{T + 3}, 4096")
            a(f"buffer_store_dwordx4 {vr(t, 4)}, v{VA}, {sr(S_WS, 4)}, s{T + 5 if pp == 2 else T + 3} offen{off} {SF}")
        t = 248 + 2 * par
        for e in range(2):
            p = acc(par, 6) + 2 * e
            a(f"v_cvt_pk_bf16_f32 v{t + e}, v{p}, v{p + 1}")
        off = f" offset:{par * 1024}" if par else ""
        a(f"buffer_store_dwordx2 {vr(t, 2)}, v{VA}, {sr(S_WS, 4)}, s{T + 4} offen{off} {SF}")
    prof.stamp(a, 12)


def phase2(a, prof):
    transition(a, prof)
    mainloop(a, prof)
    epilogue(a, prof)
```

```python
from common import *
from phase1 import (S_WAVE, S_T, S_WS, S_CNT, S_TMP, SF, P_WO, P_WOUT, P_OUT, P_WS, flat, set_flag)

S_W, S_ACT, S_OUT = 4, 8, 12
S_TI, S_DJ = 25, 26
S_IT, S_MW = 36, 32
S_KW, S_KA = 80, 84
S_TG = 55
S_GOFF = 53
LDS_W = 61440
ACC_A, ACC_B = 0, 32
A_RING = 128
V_WD, V_AD, V_RA = 112, 114, 116
V_L = 123
V_FA, V_FX = 124, 125
V_G = 126
V_T = 160
OUTF = "".join(" " + k[4:].replace("+", " ") for k in KNOB if k.startswith("outf"))
SET = [0, 32]


def mfmas(accb, s, u, kk):
    return [mfma(vr(accb + (par * 4 + c) * 4, 4), ar(s + (kk * 4 + c) * 4, 4), ar(A_RING + u * 16 + (kk * 2 + par) * 4, 4))
            for c in range(4) for par in range(2)]


def reads(s, slot):
    return [f"ds_read_b64_tr_b16 {ar(s + (kk * 4 + c) * 4 + 2 * h, 2)}, v{V_RA + c} offset:{slot * 8192 + kk * 4096 + h * 2048}"
            for kk in range(2) for c in range(4) for h in range(2)]


def dma_w(slot):
    return [f"s_add_u32 m0, s{S_MW}, {slot * 8192}",
            f"buffer_load_dwordx4 v{V_WD}, {sr(S_W, 4)}, s{S_KW + slot} offen lds",
            f"buffer_load_dwordx4 v{V_WD + 1}, {sr(S_W, 4)}, s{S_KW + slot} offen offset:1024 lds"]


def act_loads(u, kk):
    o = []
    for par in range(2):
        ofs = kk * 2048 + par * 1024
        off = f" offset:{ofs}" if ofs else ""
        o.append(f"buffer_load_dwordx4 {ar(A_RING + u * 16 + (kk * 2 + par) * 4, 4)}, v{V_AD}, {sr(S_ACT, 4)}, s{S_KA + u} offen{off} {SF}")
    return o


def srd_items(dst, ptr, size, off=0):
    a = Asm()
    srd_from(a, dst, ptr, size, off)
    return [a.items[:2]] + a.items[2:]


def setup_items(part):
    T = S_T + 2
    L = V_L
    t0, t1, t2 = V_T, V_T + 1, V_T + 2
    if part == 0:
        o = [f"s_lshl_b32 s{S_TG}, s{S_TI}, 2", f"s_add_u32 s{S_TG}, s{S_TG}, s{S_WAVE}"]
        o += srd_items(S_W, P_WO, 1024 * 2048) + srd_items(S_ACT, P_WS, SZ_ACT, WS_ACT)
        o += [f"v_lshrrev_b32 v{t0}, 3, v{L}", f"v_and_b32 v{t1}, 7, v{L}", f"v_and_b32 v{t2}, 6, v{t0}", f"v_xor_b32 v{t1}, v{t1}, v{t2}",
              f"v_lshlrev_b32 v{t1}, 4, v{t1}", f"v_lshl_add_u32 v{t1}, v{t0}, 11, v{t1}",
              f"s_lshl_b32 s{T}, s{S_WAVE}, 15", f"s_lshl_b32 s{T + 1}, s{S_DJ}, 7", f"s_add_u32 s{T}, s{T}, s{T + 1}",
              f"v_add_u32 v{V_WD}, s{T}, v{t1}", f"v_add_u32 v{V_WD + 1}, {8 * 2048 - 1024}, v{V_WD}",
              f"s_mul_i32 s{T}, s{S_TG}, {88 * 2048}", f"v_lshl_add_u32 v{V_AD}, v{L}, 4, s{T}",
              f"s_lshl_b32 s{S_MW}, s{S_WAVE}, 11", f"s_add_u32 s{S_MW}, s{S_MW}, {LDS_W}"]
        return o
    o = srd_items(S_OUT, P_OUT, 2048 * 2048)
    o += [f"v_lshrrev_b32 v{t0}, 4, v{L}", f"v_bfe_u32 v{t1}, v{L}, 2, 2", f"v_lshl_add_u32 v{t0}, v{t0}, 2, v{t1}",
          f"v_bfe_u32 v{t1}, v{t0}, 1, 2", f"v_lshlrev_b32 v{t0}, 7, v{t0}", f"v_and_b32 v{t2}, 3, v{L}",
          f"v_lshl_add_u32 v{t0}, v{t2}, 3, v{t0}", f"v_add_u32 v{t0}, {LDS_W}, v{t0}"]
    for cb in range(4):
        o += [f"v_xor_b32 v{t2}, {cb}, v{t1}", f"v_lshl_add_u32 v{V_RA + cb}, v{t2}, 5, v{t0}"]
    o += [f"s_lshl_b32 s{S_GOFF}, s{S_TI}, 7"]
    o += [f"s_add_u32 s{T}, s{S_TI}, s{S_DJ}" if "norot3" not in KNOB else f"s_mov_b32 s{T}, 0"]
    for u in range(4):
        o += [f"s_add_u32 s{T + 1}, s{T}, {u}", f"s_and_b32 s{T + 1}, s{T + 1}, 3", f"s_lshl_b32 s{S_KW + u}, s{T + 1}, 17",
              f"s_lshl_b32 s{S_KA + u}, s{T + 1}, 12"]
    return o


def first_loads():
    o = []
    for u in range(4):
        o += dma_w(u) + act_loads(u, 0) + act_loads(u, 1)
        o += [f"s_add_u32 s{S_KW + u}, s{S_KW + u}, {256 * 2048}", f"s_add_u32 s{S_KA + u}, s{S_KA + u}, 16384"]
    return o


def step(a, accb, u, vm=16, loads=True, rd=True, barrier=True, after_barrier=None, extra=()):
    a(f"s_waitcnt vmcnt({vm}) lgkmcnt(0)")
    if barrier:
        a("s_barrier")
    if after_barrier:
        after_barrier()
    s = SET[u & 1]
    m = mfmas(accb, s, u, 0) + mfmas(accb, s, u, 1)
    sl = Slots(16, cap=2)
    if loads:
        sl.chain(dma_w(u), 0, 1)
    if rd:
        sl.chain(reads(SET[1 - (u & 1)], (u + 1) & 3), 0, 0.75, strict=False)
    if loads:
        sl.chain([f"s_add_u32 s{S_KW + u}, s{S_KW + u}, {256 * 2048}"], 4)
        sl.chain(act_loads(u, 0), 8, 2)
    if extra:
        sl.chain(list(extra), 4, 12.0 / len(extra), strict=False)
    a(sl.emit(m))
    if loads:
        a(act_loads(u, 1))
        a(f"s_add_u32 s{S_KA + u}, s{S_KA + u}, 16384")


def phase3(a, prof):
    T = S_T
    L = V_L
    t0, t1, t2 = V_T, V_T + 1, V_T + 2
    n, g = V_T + 5, V_T + 6
    a(f"v_and_b32 v{V_FA}, 15, v{L}\nv_lshlrev_b32 v{V_FA}, 2, v{V_FA}\nv_add_u32 v{V_FA}, {FL_G:#x}, v{V_FA}")
    for i in range(64):
        a(f"v_mov_b32 v{i}, 0")
    a(f"s_lshl_b32 s{T + 8}, s{S_DJ}, 2\ns_add_u32 s{T + 8}, s{T + 8}, s{S_GOFF}")
    a("s_waitcnt vmcnt(8)\ns_barrier")
    a(reads(SET[0], 0))
    gload = f"buffer_load_dword v{V_FX}, v{V_FA}, {sr(S_WS, 4)}, s{S_GOFF} offen sc1"

    def publish():
        set_flag(a, "L_p3_gflag", FL_G, f"s{T + 8}", 252)

    def wait_u():
        check(a, V_FX, ("all_nonzero",), f"s{S_TMP}")
        a("s_cbranch_scc1 L_p3_g_out")
        spin(a, "L_p3_g", gload, V_FX, ("all_nonzero",), f"s{S_CNT}", f"s{S_TMP}")
        srd_from(a, S_W, P_WOUT, 1792 * 2048)
        for u in range(4):
            a(f"s_and_b32 s{S_KW + u}, s{S_KW + u}, {256 * 2048 - 1}")
        prof.stamp(a, 13)

    for j in range(16):
        step(a, ACC_A, j & 3, after_barrier={3: publish, 12: wait_u}.get(j), extra=[gload] if j == 8 else ())
    a(f"s_mov_b32 s{S_IT}, 0")
    a.label("L_p3_loop")
    for u in range(4):
        step(a, ACC_B, u)
    a(f"s_add_u32 s{S_IT}, s{S_IT}, 1\ns_cmp_lt_u32 s{S_IT}, 6\ns_cbranch_scc1 L_p3_loop")
    ex = [f"v_and_b32 v{n}, 15, v{L}", f"v_lshlrev_b32 v{t0}, 3, v{n}", f"s_lshl_b32 s{T}, s{S_TG}, 7", f"s_add_u32 s{T}, s{T}, {WS_GATE:#x}",
          f"buffer_load_dwordx2 {vr(V_G, 2)}, v{t0}, {sr(S_WS, 4)}, s{T} offen {SF}"]
    step(a, ACC_B, 0, loads=False, extra=ex)
    ex = [f"v_lshrrev_b32 v{g}, 4, v{L}", f"v_lshlrev_b32 v{t0}, 12, v{n}", f"v_and_b32 v{t1}, 1, v{g}", f"v_lshl_add_u32 v{t0}, v{t1}, 5, v{t0}",
          f"v_lshrrev_b32 v{t1}, 1, v{g}", f"v_lshl_add_u32 v{t0}, v{t1}, 4, v{t0}",
          f"s_lshl_b32 s{T}, s{S_TG}, 16", f"s_lshl_b32 s{T + 1}, s{S_DJ}, 7", f"s_add_u32 s{T}, s{T}, s{T + 1}"]
    step(a, ACC_B, 1, vm=10, loads=False, extra=ex)
    ex = [f"v_mul_f32 v{ACC_A + k}, v{ACC_A + k}, v{V_G + (k >> 4)}" for k in range(32)]
    step(a, ACC_B, 2, vm=4, loads=False)
    step(a, ACC_B, 3, vm=0, loads=False, rd=False, barrier=False, extra=ex + [f"v_sub_f32 v{V_G}, 1.0, v{V_G}", f"v_sub_f32 v{V_G + 1}, 1.0, v{V_G + 1}"])
    prof.stamp(a, 14)
    for k in range(16):
        par = k >> 3
        a(f"v_pk_fma_f32 {vr(ACC_A + 2 * k, 2)}, {vr(ACC_B + 2 * k, 2)}, {vr(V_G, 2)}, {vr(ACC_A + 2 * k, 2)} "
          f"op_sel:[0,{par},0] op_sel_hi:[1,{par},1]")
    for par in range(2):
        for pr in range(2):
            t = 64 + (par * 2 + pr) * 4
            for cc in range(2):
                for e in range(2):
                    p = ACC_A + (par * 4 + pr * 2 + cc) * 4 + 2 * e
                    a(f"v_cvt_pk_bf16_f32 v{t + 2 * cc + e}, v{p}, v{p + 1}")
            a(f"v_permlane16_swap_b32 v{t}, v{t + 2}\nv_permlane16_swap_b32 v{t + 1}, v{t + 3}")
            o = par * 2048 + pr * 64
            off = f" offset:{o}" if o else ""
            a(f"buffer_store_dwordx4 {vr(t, 4)}, v{t0}, {sr(S_OUT, 4)}, s{T} offen{off}{OUTF}")
```

```python
from asmlib import *

NAME = "gated_mix__sliding_local_dilated__mixer_gmlp__prompt"

KA_X, KA_WQKV, KA_WO, KA_BX, KA_WIN, KA_WSP, KA_BSP, KA_WOUT, KA_GATE, KA_OUT, KA_DBG, KA_WS = [8 * i for i in range(12)]

WS_ACT = 0x0000000
WS_H1 = 0x0C00000
WS_Z2N = 0x1400000
WS_GATE = 0x1C00000
WS_STATS = 0x1C10000
WS_FLAG = 0x1C60000
WS_PROF = 0x1D00000
SZ_ACT = 64 * 88 * 2048
SZ_H1 = 64 * 112 * 1024
SZ_Z2N = 112 * 65536
SZ_GATE = 2048 * 4
SZ_STATS = 16 * 16 * 1024
FL_F, FL_H, FL_G = WS_FLAG, WS_FLAG + 1024, WS_FLAG + 2048

import os
KNOB = set(os.environ.get('KNOB', '').split(','))

SRD3 = "0x20000"


def srd_from(a, dst, ptr, size, off=0):
    if off:
        a(f"s_add_u32 s{dst}, s{ptr}, {off:#x}")
        a(f"s_addc_u32 s{dst + 1}, s{ptr + 1}, 0")
    else:
        a(f"s_mov_b32 s{dst}, s{ptr}")
        a(f"s_mov_b32 s{dst + 1}, s{ptr + 1}")
    if isinstance(size, str):
        a(f"s_mov_b32 s{dst + 2}, {size}")
    else:
        a(f"s_mov_b32 s{dst + 2}, {size:#x}")
    a(f"s_mov_b32 s{dst + 3}, {SRD3}")


def kernel_head(a, name):
    a.raw(".text")
    a.raw(f".globl {name}")
    a.raw(".p2align 8")
    a.raw(f".type {name},@function")
    a.raw(f"{name}:")


def kernel_desc(name, nfv=512, acc=256):
    return f""".section .rodata,"a"
.p2align 6
.amdhsa_kernel {name}
  .amdhsa_next_free_vgpr {nfv}
  .amdhsa_next_free_sgpr 102
  .amdhsa_accum_offset {acc}
  .amdhsa_group_segment_fixed_size 0
  .amdhsa_kernarg_size 96
  .amdhsa_user_sgpr_count 2
  .amdhsa_user_sgpr_kernarg_segment_ptr 1
  .amdhsa_system_sgpr_workgroup_id_x 1
  .amdhsa_float_denorm_mode_32 3
.end_amdhsa_kernel
"""


class Slots:
    def __init__(self, n, cap=1):
        self.n = n
        self.cap = cap
        self.gaps = [[] for _ in range(n)]

    def put(self, item, want):
        p = max(0, min(want, self.n - 1))
        cap = self.cap
        while True:
            for q in range(p, self.n):
                if len(self.gaps[q]) < cap:
                    self.gaps[q].append(item)
                    return q
            cap += 1

    def chain(self, items, start, stride=1, strict=True):
        last = -1
        pos = float(start)
        out = []
        for it in items:
            want = max(int(pos), last + (1 if strict else 0))
            if want >= self.n:
                self.gaps[self.n - 1].append(it)
                last = self.n - 1
            else:
                last = self.put(it, want)
            out.append(last)
            pos += stride
        return out

    def emit(self, main):
        out = []
        for m, g in zip(main, self.gaps):
            out.append(m)
            for f in g:
                if isinstance(f, (list, tuple)):
                    out.extend(f)
                else:
                    out.append(f)
        return out


GELU_C0 = -2.0 * 0.7978845608028654 * 1.4426950408889634
GELU_C1 = GELU_C0 * 0.044715


def gelu_pairs(xs, ts, vk):
    o = []
    for x, t in zip(xs, ts):
        o.append(f"v_pk_mul_f32 {vr(t, 2)}, {vr(x, 2)}, {vr(x, 2)}")
    for x, t in zip(xs, ts):
        o.append(f"v_pk_fma_f32 {vr(t, 2)}, {vr(t, 2)}, {vr(vk, 2)}, {vr(vk, 2)} op_sel:[0,0,1] op_sel_hi:[1,0,1]")
    for x, t in zip(xs, ts):
        o.append(f"v_pk_mul_f32 {vr(t, 2)}, {vr(t, 2)}, {vr(x, 2)}")
    for x, t in zip(xs, ts):
        o.append(f"v_exp_f32 v{t}, v{t}")
        o.append(f"v_exp_f32 v{t + 1}, v{t + 1}")
    for x, t in zip(xs, ts):
        o.append(f"v_pk_add_f32 {vr(t, 2)}, {vr(t, 2)}, 1.0 op_sel_hi:[1,0]")
    for x, t in zip(xs, ts):
        o.append(f"v_rcp_f32 v{t}, v{t}")
        o.append(f"v_rcp_f32 v{t + 1}, v{t + 1}")
    for x, t in zip(xs, ts):
        o.append(f"v_pk_mul_f32 {vr(x, 2)}, {vr(x, 2)}, {vr(t, 2)}")
    return o


def mfma(d, a_, b_, c=None):
    c = d if c is None else c
    return f"v_mfma_f32_16x16x32_bf16 {d}, {a_}, {b_}, {c}"


class Prof:
    VR, VC = 254, 255

    def __init__(self, on):
        self.on = on
        self.n = 0

    def stamp(self, a, idx=None):
        if idx is not None:
            self.n = idx
        for k in KNOB:
            if k.startswith("pad") and int(k[3:].split("_")[0]) == self.n:
                self.npad = getattr(self, "npad", 0) + 1
                L = f"L_pad{self.npad}"
                a(f"s_add_u32 s99, s98, {int(k.split('_')[1]) * 100}\ns_mov_b32 s96, 0")
                a.label(L)
                a(f"s_memrealtime s[92:93]\ns_waitcnt lgkmcnt(0)\ns_add_u32 s96, s96, 1\ns_cmp_gt_u32 s96, 100000\ns_cbranch_scc1 {L}_out")
                a(f"s_sub_u32 s92, s92, s99\ns_cmp_lt_i32 s92, 0\ns_cbranch_scc1 {L}")
                a.label(L + "_out")
        if self.on:
            a("s_memrealtime s[92:93]\ns_memtime s[94:95]\ns_waitcnt lgkmcnt(0)")
            a(f"v_writelane_b32 v{self.VR}, s92, {self.n}\nv_writelane_b32 v{self.VC}, s94, {self.n}")
        self.n += 1

    def init(self, a):
        if self.on:
            a(f"v_mov_b32 v{self.VR}, 0\nv_mov_b32 v{self.VC}, 0")

    def flush(self, a, ws_srd, s_wg, s_wave, dbg_srd=None):
        if not self.on:
            return
        mode = [k for k in KNOB if k.startswith("dbg")]
        if mode:
            sel = mode[0][3:]
            a(f"v_readlane_b32 s92, v{self.VR}, 0\ns_not_b32 s92, s92")
            if sel == "min":
                a(f"v_cmp_eq_u32 vcc, 0, v{self.VR}\nv_not_b32 v{self.VR}, v{self.VR}\nv_cndmask_b32 v{self.VR}, v{self.VR}, 0, vcc")
            elif sel != "max":
                a(f"s_cmp_eq_u32 {s_wg}, {int(sel)}\ns_cbranch_scc0 L_dbg_skip")
            a(f"v_writelane_b32 v{self.VR}, s92, 11")
            a("v_mbcnt_lo_u32_b32 v0, -1, 0\nv_mbcnt_hi_u32_b32 v0, -1, v0\nv_lshlrev_b32 v0, 2, v0")
            a(f"s_mov_b64 exec, 0xfffe\nbuffer_atomic_umax v{self.VR}, v0, {sr(dbg_srd, 4)}, 0 offen sc1\ns_mov_b64 exec, -1")
            a.label("L_dbg_skip")
            return
        a(f"s_lshl_b32 s92, {s_wg}, 2\ns_add_u32 s92, s92, {s_wave}\ns_lshl_b32 s92, s92, 8\ns_add_u32 s92, s92, {WS_PROF:#x}")
        a("v_mbcnt_lo_u32_b32 v0, -1, 0\nv_mbcnt_hi_u32_b32 v0, -1, v0\nv_lshlrev_b32 v0, 2, v0")
        a(f"s_mov_b32 exec_hi, 0\nbuffer_store_dword v{self.VR}, v0, {sr(ws_srd, 4)}, s92 offen")
        a(f"buffer_store_dword v{self.VC}, v0, {sr(ws_srd, 4)}, s92 offen offset:128\ns_mov_b32 exec_hi, -1")


SPIN_MAX = "0x40000"


def spin(a, label, load, vdat, cond, s_cnt, s_tmp):
    a(f"s_mov_b32 {s_cnt}, 0")
    a.label(label)
    a(load)
    a("s_waitcnt vmcnt(0)")
    check(a, vdat, cond, s_tmp)
    a(f"s_cbranch_scc1 {label}_out")
    a(f"s_add_u32 {s_cnt}, {s_cnt}, 1\ns_cmp_lt_u32 {s_cnt}, {SPIN_MAX}\ns_cbranch_scc1 {label}")
    a.label(label + "_out")


def check(a, vdat, cond, s_tmp):
    if cond[0] == "all_nonzero":
        a(f"v_cmp_eq_u32 vcc, 0, v{vdat}\ns_cmp_eq_u64 vcc, 0")
    elif cond[0] == "ge":
        a(f"v_readfirstlane_b32 {s_tmp}, v{vdat}\ns_cmp_ge_u32 {s_tmp}, {cond[1]}")
    else:
        a(cond[1])
        a(f"v_cmp_eq_u32 vcc, -1, v{vdat}\ns_cmp_eq_u64 vcc, 0")
```

```python
import sys, os
sys.path.insert(0, os.path.dirname(os.path.abspath(__file__)))
from common import *
import phase1, phase2, phase3

HEADER = """; gated_mix: x -> [local dilated attention | gMLP spatial gating] -> gated mix.  Generated by gen/gen.py.
; @launch grid=(256,1,1) block=(256,1,1) lds=163840
.amdgcn_target "amdgcn-amd-amdhsa--gfx950"
"""


def build(prof=False):
    a = Asm()
    name = NAME + "_kernel"
    kernel_head(a, name)
    p = Prof(prof)
    a("s_cmp_ge_u32 s2, 256\ns_cbranch_scc0 L_start\ns_endpgm")
    a.label("L_start")
    if "diagx" in KNOB:
        a("s_getreg_b32 s92, hwreg(HW_REG_XCC_ID)\ns_and_b32 s92, s92, 7\ns_and_b32 s93, s2, 7\ns_cmp_eq_u32 s92, s93\ns_cbranch_scc1 L_diag_out\ns_mov_b32 s92, 0")
        a.label("L_diag")
        a("s_add_u32 s92, s92, 1\ns_cmp_lt_u32 s92, 4000\ns_cbranch_scc1 L_diag")
        a.label("L_diag_out")
    if "diagt" in KNOB or any(k.startswith("pad") for k in KNOB):
        a("s_memrealtime s[98:99]")
    phase1.load_kernargs(a)
    p.init(a)
    p.stamp(a, 0)
    phase1.phase1(a, p)
    phase2.phase2(a, p)
    phase3.phase3(a, p)
    if "diagt" in KNOB:
        a("s_waitcnt vmcnt(0)\ns_add_u32 s98, s98, 10000\ns_mov_b32 s96, 0")
        a.label("L_diagt")
        a("s_memrealtime s[92:93]\ns_waitcnt lgkmcnt(0)\ns_add_u32 s96, s96, 1\ns_cmp_gt_u32 s96, 100000\ns_cbranch_scc1 L_diagt_out")
        a("s_sub_u32 s92, s92, s98\ns_cmp_lt_i32 s92, 0\ns_cbranch_scc1 L_diagt")
        a.label("L_diagt_out")
    if prof:
        a("s_waitcnt vmcnt(0)")
        p.stamp(a, 15)
        p.flush(a, phase1.S_WS, "s2", f"s{phase1.S_WAVE}", phase1.S_DBG)
    a("s_endpgm")
    txt = a.finish()
    return HEADER + txt + kernel_desc(name), a


if __name__ == "__main__":
    out = sys.argv[1] if len(sys.argv) > 1 else "cdna_kernels/" + NAME + ".s"
    prof = "--prof" in sys.argv
    txt, a = build(prof)
    open(out, "w").write(txt)
    print("wrote", out, len(txt), "bytes; nops inserted:", a.n_nops)
```
